```python
import torch

def _softmax(x, axis=-1):
    return torch.softmax(x, dim=axis)
def _gelu(x):
    return torch.nn.functional.gelu(x, approximate="tanh")
def _silu(x):
    return torch.nn.functional.silu(x)
def _sigmoid(x):
    return torch.sigmoid(x)
def _layernorm(x, axis=-1, eps=1e-5):
    m = x.mean(dim=axis, keepdim=True)
    v = x.var(dim=axis, keepdim=True, unbiased=False)
    return (x - m) / torch.sqrt(v + eps)
def _scatter_add(tgt, idx, src, axis=0):
    return tgt.clone().index_add_(axis, idx, src)
def _segment_sum(src, seg, n):
    out = torch.zeros((n,) + src.shape[1:], dtype=src.dtype)
    return out.index_add_(0, seg, src)
def _pad(x, pw):
    flat = tuple(v for pair in reversed(pw) for v in pair)
    return torch.nn.functional.pad(x, flat)

kernel_name = 'sequential_preLN__ssm_conv_s4__dense_activation_silu__prompt'

def setup_inputs():

    _w = (lambda a: (lambda t: t.to(torch.bfloat16) if t.is_floating_point() else t)(torch.as_tensor(a)))
    def _A_setup():
        B, L, D, N = 1, 2048, 512, 128
        A_re = -(lambda _x: torch.exp(torch.as_tensor(_x)))((lambda *s: torch.randn(*s, dtype=torch.bfloat16) * 6.4)(D, N))
        A_im = torch.pi * (lambda *s: torch.randn(*s, dtype=torch.bfloat16) * 0.05)(D, N)
        B_re = (lambda *s: torch.randn(*s, dtype=torch.bfloat16) * 0.1)(D, N)
        B_im = (lambda *s: torch.randn(*s, dtype=torch.bfloat16) * 0.1)(D, N)
        C_re = (lambda *s: torch.randn(*s, dtype=torch.bfloat16) * 0.1)(D, N)
        C_im = (lambda *s: torch.randn(*s, dtype=torch.bfloat16) * 0.1)(D, N)
        log_dt = (lambda *s: torch.randn(*s, dtype=torch.bfloat16) * 0.05)(D) * 0.5 - 4.0
        Dskip = (lambda *s: torch.randn(*s, dtype=torch.bfloat16) * 0.05)(D)
        return {
            "u": _w((lambda *s: torch.randn(*s, dtype=torch.bfloat16) * 0.05)(B, L, D)),
            "A_re": _w(A_re),
            "A_im": _w(A_im),
            "B_re": _w(B_re),
            "B_im": _w(B_im),
            "C_re": _w(C_re),
            "C_im": _w(C_im),
            "log_dt": _w(log_dt),
            "Dskip": _w(Dskip),
        }
    _A_in = _A_setup()

    def _B_setup():
        B, S, D, F = 1, 2048, 512, 1792
        return {
            "x": _w((lambda *s: torch.randn(*s, dtype=torch.bfloat16) * 0.05)(B, S, D)),
            "w1": _w((lambda *s: torch.randn(*s, dtype=torch.bfloat16) * 0.8)(D, F) * (D ** -0.5)),
            "w2": _w((lambda *s: torch.randn(*s, dtype=torch.bfloat16) * 0.2)(F, D) * (F ** -0.5)),
        }
    _B_in = _B_setup()

    return {
        "A_u": _A_in["u"],
        "A_A_re": _A_in["A_re"],
        "A_A_im": _A_in["A_im"],
        "A_B_re": _A_in["B_re"],
        "A_B_im": _A_in["B_im"],
        "A_C_re": _A_in["C_re"],
        "A_C_im": _A_in["C_im"],
        "A_log_dt": _A_in["log_dt"],
        "A_Dskip": _A_in["Dskip"],
        "B_x": _B_in["x"],
        "B_w1": _B_in["w1"],
        "B_w2": _B_in["w2"],
    }

def reference(A_u, A_A_re, A_A_im, A_B_re, A_B_im, A_C_re, A_C_im, A_log_dt, A_Dskip, B_x, B_w1, B_w2):
    def _A_ref(u, A_re, A_im, B_re, B_im, C_re, C_im, log_dt, Dskip):
        Bsz, L, D = u.shape
        dt = torch.exp(log_dt)[:, None]
        A = A_re + 1j * A_im
        Bc = B_re + 1j * B_im
        Cc = C_re + 1j * C_im
        logdA = dt * A
        dB = dt * Bc
        l = (lambda x, dt: x.to(dt))(torch.arange(L), A_re.dtype)
        P = torch.exp(logdA[:, :, None] * l[None, None, :])
        K = torch.einsum("dn,dnl,dn->dl", Cc, P, dB).real
        L2 = 2 * L
        Kp = _pad(K, ((0, 0), (0, L)))
        up = (lambda x, *d: x.permute(*d))(u, 0, 2, 1)
        up = _pad(up, ((0, 0), (0, 0), (0, L)))
        Kf = (lambda x, axes=(-2,-1): torch.fft.rfft2(x.float(), dim=axes))(Kp[:, None, :], axes=(-2, -1))
        Uf = (lambda x, axes=(-2,-1): torch.fft.rfft2(x.float(), dim=axes))(up[:, :, None, :], axes=(-2, -1))
        Yf = Uf * Kf[None, :, :, :]
        y = (lambda x, s, axes=(-2,-1): torch.fft.irfft2(x, s=s, dim=axes).to(torch.bfloat16))(Yf, (1, L2), axes=(-2, -1))[:, :, 0, :L]
        y = (lambda x, *d: x.permute(*d))(y, 0, 2, 1) + u * Dskip[None, None, :]
        return y

    def _B_ref(x, w1, w2):
        h = torch.einsum("bsd,df->bsf", x, w1)
        h = _silu(h)
        out = torch.einsum("bsf,fd->bsd", h, w2)
        return out

    x = A_u
    h = x + _A_ref(_layernorm(x, axis=-1), A_A_re, A_A_im, A_B_re, A_B_im, A_C_re, A_C_im, A_log_dt, A_Dskip)
    h2 = h + _B_ref(_layernorm(h, axis=-1), B_w1, B_w2)
    return h2
```

```python
from lib import *

def wave_reduce(a, regs, sdst):
    for sh in (1, 2, 4, 8):
        a.e('s_nop 1')
        for r in regs:
            a.e(f'v_add_f32_dpp v{r}, v{r}, v{r} row_shr:{sh} row_mask:0xf bank_mask:0xf bound_ctrl:0')
    a.e('s_nop 1')
    for r in regs:
        a.e(f'v_add_f32_dpp v{r}, v{r}, v{r} row_bcast:15 row_mask:0xa bank_mask:0xf')
    a.e('s_nop 1')
    for r in regs:
        a.e(f'v_add_f32_dpp v{r}, v{r}, v{r} row_bcast:31 row_mask:0xc bank_mask:0xf')
    a.e('s_nop 1')
    for i, r in enumerate(regs):
        a.e(f'v_readlane_b32 s{sdst+i}, v{r}, 63')
    a.e('s_nop 3')

def gen_k1():
    a = Asm()
    a.e('s_load_dwordx16 s[8:23], s[0:1], 0')
    a.e('s_load_dwordx8 s[24:31], s[0:1], 64')
    a.e('s_load_dwordx2 s[32:33], s[0:1], 112')
    a.e('v_lshrrev_b32 v1, 6, v0')
    a.e('s_nop 1')
    a.e('v_readfirstlane_b32 s3, v1')
    a.e('v_and_b32 v1, 63, v0')
    a.e('s_waitcnt lgkmcnt(0)')
    a.e('s_cmp_lt_u32 s2, 512')
    a.e('s_cbranch_scc1 K1_KGEN')
    a.e('s_cmp_lt_u32 s2, 576')
    a.e('s_cbranch_scc1 K1_LN')
    a.e('s_cmp_lt_u32 s2, 688')
    a.e('s_cbranch_scc1 K1_TR')
    a.e('s_endpgm')

    a.label('K1_KGEN')
    for i in range(6):
        a.srd(36 + 4 * i, 10 + 2 * i, 131072)
    a.srd(60, 22, 1024)
    a.e('v_and_b32 v2, 127, v0')
    a.e('v_lshlrev_b32 v3, 1, v2')
    a.e('s_lshl_b32 s4, s2, 8')
    a.e('v_add_u32 v3, s4, v3')
    a.e('s_lshl_b32 s5, s2, 1')
    a.e('v_mov_b32 v4, s5')
    for i in range(6):
        a.e(f'buffer_load_ushort v{8+i}, v3, s[{36+4*i}:{39+4*i}], 0 offen')
    a.e('buffer_load_ushort v14, v4, s[60:63], 0 offen')
    a.e('s_waitcnt vmcnt(0)')
    for i in range(7):
        a.e(f'v_lshlrev_b32 v{8+i}, 16, v{8+i}')
    a.e('v_mul_f32 v14, 0x3fb8aa3b, v14')
    a.e('v_exp_f32 v14, v14')
    a.e('s_nop 1')
    a.e('v_cvt_pk_bf16_f32 v14, v14, v14')
    a.e('v_and_b32 v14, 0xffff0000, v14')
    a.e('v_mul_f32 v16, v14, v8')
    a.e('v_mul_f32 v17, v14, v9')
    a.e('v_mul_f32 v10, v14, v10')
    a.e('v_mul_f32 v11, v14, v11')
    a.e('v_mul_f32 v16, 0x3fb8aa3b, v16')
    a.e('v_mul_f32 v17, 0.15915494, v17')
    a.e('v_mul_f32 v18, v12, v10')
    a.e('v_fma_f32 v18, -v13, v11, v18')
    a.e('v_mul_f32 v19, v12, v11')
    a.e('v_fma_f32 v19, v13, v10, v19')
    a.e('v_mov_b32 v20, v16')
    a.e('v_mov_b32 v21, v17')
    a.e('v_mov_b32 v22, v19')
    a.e('v_mov_b32 v23, v18')
    a.e('v_sub_f32 v19, 0, v19')
    a.e('v_lshlrev_b32 v5, 5, v2')
    a.e('ds_write_b128 v5, v[16:19]')
    a.e('ds_write_b128 v5, v[20:23] offset:16')
    a.e('s_waitcnt lgkmcnt(0)')
    a.e('s_barrier')
    a.e('v_and_b32 v2, 15, v1')
    a.e('v_lshrrev_b32 v3, 4, v1')
    a.e('v_lshlrev_b32 v5, 4, v3')
    a.e('v_lshlrev_b32 v6, s3, v2')
    a.e('v_cvt_f32_u32 v7, v6')
    a.e('v_add_u32 v6, 8, v2')
    a.e('s_cmp_eq_u32 s3, 0')
    a.e('s_cselect_b32 s4, 0, 1')
    a.e('v_mov_b32 v8, s4')
    a.e('v_cmp_eq_u32 vcc, 0, v8')
    a.e('s_nop 1')
    a.e('v_cndmask_b32 v6, v6, v2, vcc')
    a.e('v_lshlrev_b32 v6, s3, v6')
    a.e('v_lshlrev_b32 v6, 4, v6')
    a.e('v_cvt_f32_u32 v6, v6')
    a.e('v_and_b32 v8, 1, v3')
    a.e('v_cvt_f32_u32 v8, v8')
    a.e('v_add_f32 v8, 1.0, v8')
    a.e('v_mul_f32 v8, 0x3e800000, v8')
    for r in range(4):
        a.e(f'v_mov_b32 v{24+r}, 0')
    a.e('ds_read_b128 v[32:35], v5')
    for t in range(64):
        p = 32 if t % 2 == 0 else 36
        pn = 36 if t % 2 == 0 else 32
        a.e('s_waitcnt lgkmcnt(0)')
        if t < 63:
            a.e(f'ds_read_b128 v[{pn}:{pn+3}], v5 offset:{64*(t+1)}')
        a.e(f'''
        v_mul_f32 v40, v{p}, v6
        v_mul_f32 v41, v{p}, v7
        v_fma_f32 v42, v{p+1}, v6, v8
        v_mul_f32 v43, v{p+1}, v7
        v_exp_f32 v40, v40
        v_exp_f32 v41, v41
        v_fract_f32 v42, v42
        v_fract_f32 v43, v43
        v_sin_f32 v42, v42
        v_cos_f32 v44, v43
        v_sin_f32 v43, v43
        s_nop 0
        v_mul_f32 v40, v40, v42
        v_mul_f32 v44, v{p+2}, v44
        v_fma_f32 v44, v{p+3}, v43, v44
        v_mul_f32 v41, v41, v44
        s_nop 1
        v_mfma_f32_16x16x4_f32 v[24:27], v40, v41, v[24:27]
        ''')
    a.e('s_nop 15')
    a.srd_off(36, 32, WS_KC, 0x200000)
    a.e('s_add_u32 s4, s3, 1')
    a.e('s_lshl_b32 s4, s4, 7')
    a.e('s_cmp_eq_u32 s3, 0')
    a.e('s_cselect_b32 s4, 0, s4')
    a.e('s_cselect_b32 s5, 16, 8')
    a.e('s_cmp_eq_u32 s3, 3')
    a.e('s_cselect_b32 s5, 9, s5')
    a.e('s_lshl_b32 s6, s2, 10')
    a.e('s_add_u32 s4, s4, s6')
    a.e('v_lshlrev_b32 v9, 2, v3')
    a.e('v_lshlrev_b32 v10, 4, v9')
    a.e('v_add_u32 v10, v10, v2')
    a.e('v_add_u32 v10, s4, v10')
    a.e('v_lshlrev_b32 v10, 2, v10')
    for r in range(4):
        a.e(f'v_add_u32 v11, {r}, v9')
        a.e('v_cmp_gt_u32 vcc, s5, v11')
        a.e('s_and_saveexec_b64 s[6:7], vcc')
        a.e(f'buffer_store_dword v{24+r}, v10, s[36:39], 0 offen offset:{64*r}')
        a.e('s_mov_b64 exec, s[6:7]')
    a.e('s_endpgm')

    a.label('K1_LN')
    a.srd(36, 8, 0x200000)
    a.srd_off(40, 32, WS_UT, 0x200000)
    a.srd_off(44, 32, WS_XT, 0x200000)
    a.e('s_sub_u32 s4, s2, 512')
    a.e('s_lshl_b32 s4, s4, 5')
    a.e('s_lshl_b32 s5, s3, 3')
    a.e('s_add_u32 s4, s4, s5')
    a.e('s_lshl_b32 s5, s4, 10')
    a.e('v_lshlrev_b32 v2, 4, v1')
    a.e('v_add_u32 v2, s5, v2')
    for j in range(8):
        a.e(f'buffer_load_dwordx4 v[{16+4*j}:{19+4*j}], v2, s[36:39], 0 offen')
        a.e('v_add_u32 v2, 0x400, v2')
    a.e('s_waitcnt vmcnt(0)')
    X = lambda j, e: 64 + 8 * j + e
    for j in range(8):
        for k in range(4):
            a.e(f'v_lshlrev_b32 v{X(j,2*k)}, 16, v{16+4*j+k}')
            a.e(f'v_and_b32 v{X(j,2*k+1)}, 0xffff0000, v{16+4*j+k}')
    for j in range(8):
        a.e(f'v_add_f32 v{8+j}, v{X(j,0)}, v{X(j,1)}')
    for e in range(2, 8):
        for j in range(8):
            a.e(f'v_add_f32 v{8+j}, v{8+j}, v{X(j,e)}')
    wave_reduce(a, list(range(8, 16)), 48)
    a.e('s_mov_b32 s6, 0x3b000000')
    for j in range(8):
        a.e(f'v_mov_b32 v{48+j}, s{48+j}')
    for j in range(8):
        a.e(f'v_mul_f32 v{48+j}, s6, v{48+j}')
    for j in range(8):
        a.e(f'v_mov_b32 v{8+j}, 0')
    for e in range(8):
        for j in range(8):
            a.e(f'v_sub_f32 v{56}, v{X(j,e)}, v{48+j}')
            a.e(f'v_fma_f32 v{8+j}, v56, v56, v{8+j}')
    wave_reduce(a, list(range(8, 16)), 56)
    a.e('s_mov_b32 s7, 0x3727c5ac')
    for j in range(8):
        a.e(f'v_mov_b32 v{8+j}, s{56+j}')
    for j in range(8):
        r = 8 + j
        a.e(f'''
        v_mul_f32 v{r}, s6, v{r}
        v_cvt_pk_bf16_f32 v{r}, v{r}, v{r}
        v_and_b32 v{r}, 0xffff0000, v{r}
        v_add_f32 v{r}, s7, v{r}
        v_cvt_pk_bf16_f32 v{r}, v{r}, v{r}
        v_and_b32 v{r}, 0xffff0000, v{r}
        v_sqrt_f32 v{r}, v{r}
        s_nop 0
        v_cvt_pk_bf16_f32 v{r}, v{r}, v{r}
        v_and_b32 v{r}, 0xffff0000, v{r}
        v_rcp_f32 v{r}, v{r}
        v_cvt_pk_bf16_f32 v{48+j}, v{48+j}, v{48+j}
        v_and_b32 v{48+j}, 0xffff0000, v{48+j}
        ''')
    U = lambda j, e: 128 + 8 * j + e
    for j in range(8):
        for e in range(8):
            a.e(f'v_sub_f32 v{U(j,e)}, v{X(j,e)}, v{48+j}')
    for j in range(8):
        for e in range(8):
            a.e(f'v_cvt_pk_bf16_f32 v{U(j,e)}, v{U(j,e)}, v{U(j,e)}')
    for j in range(8):
        for e in range(8):
            a.e(f'v_and_b32 v{U(j,e)}, 0xffff0000, v{U(j,e)}')
    for j in range(8):
        for e in range(8):
            a.e(f'v_mul_f32 v{U(j,e)}, v{U(j,e)}, v{8+j}')
    a.e('v_lshlrev_b32 v2, 15, v1')
    a.e('s_lshl_b32 s5, s4, 1')
    a.e('v_add_u32 v2, s5, v2')
    for e in range(8):
        o = 192 + 8 * (e % 2)
        for k in range(4):
            a.e(f'v_cvt_pk_bf16_f32 v{o+k}, v{U(2*k,e)}, v{U(2*k+1,e)}')
            a.e(f'v_cvt_pk_bf16_f32 v{o+4+k}, v{X(2*k,e)}, v{X(2*k+1,e)}')
        a.e(f'buffer_store_dwordx4 v[{o}:{o+3}], v2, s[40:43], 0 offen')
        a.e(f'buffer_store_dwordx4 v[{o+4}:{o+7}], v2, s[44:47], 0 offen')
        a.e(f'v_add_u32 v2, 0x1000, v2')
        a.e('s_nop 1')
    a.e('s_endpgm')

    a.label('K1_TR')
    a.e('s_sub_u32 s4, s2, 576')
    a.e('s_cmp_lt_u32 s4, 56')
    a.e('s_cbranch_scc0 K1_TR2')
    a.srd(36, 28, 512 * 1792 * 2)
    a.srd_off(40, 32, WS_W1T, 512 * 1792 * 2)
    a.e('s_lshl_b32 s4, s4, 2')
    a.e('s_add_u32 s4, s4, s3')
    a.e('s_mul_i32 s5, s4, 2341')
    a.e('s_lshr_b32 s5, s5, 16')
    a.e('s_mul_i32 s6, s5, 28')
    a.e('s_sub_u32 s6, s4, s6')
    a.e('s_mov_b32 s7, 3584')
    a.e('s_mov_b32 s34, 1024')
    a.e('s_branch K1_TRGO')
    a.label('K1_TR2')
    a.srd(36, 30, 512 * 1792 * 2)
    a.srd_off(40, 32, WS_W2T, 512 * 1792 * 2)
    a.e('s_sub_u32 s4, s4, 56')
    a.e('s_lshl_b32 s4, s4, 2')
    a.e('s_add_u32 s4, s4, s3')
    a.e('s_lshr_b32 s5, s4, 3')
    a.e('s_and_b32 s6, s4, 7')
    a.e('s_mov_b32 s7, 1024')
    a.e('s_mov_b32 s34, 3584')
    a.label('K1_TRGO')
    a.e('v_and_b32 v2, 7, v1')
    a.e('v_lshrrev_b32 v3, 3, v1')
    a.e('s_lshl_b32 s5, s5, 6')
    a.e('s_lshl_b32 s6, s6, 6')
    a.e('v_lshlrev_b32 v4, 3, v3')
    a.e('v_add_u32 v4, s5, v4')
    a.e('v_lshlrev_b32 v5, 3, v2')
    a.e('v_add_u32 v5, s6, v5')
    a.e('v_mul_lo_u32 v6, v4, s7')
    a.e('v_lshl_add_u32 v6, v5, 1, v6')
    a.e('v_mul_lo_u32 v7, v5, s34')
    a.e('v_lshl_add_u32 v7, v4, 1, v7')
    for j in range(8):
        a.e(f'buffer_load_dwordx4 v[{16+4*j}:{19+4*j}], v6, s[36:39], 0 offen')
        a.e('v_add_u32 v6, s7, v6')
    a.e('s_mov_b32 s8, 0x05040100')
    a.e('s_mov_b32 s9, 0x07060302')
    a.e('s_waitcnt vmcnt(0)')
    for e in range(8):
        o = 64 + 4 * (e % 2)
        sel = 's8' if e % 2 == 0 else 's9'
        for k in range(4):
            a.e(f'v_perm_b32 v{o+k}, v{16+4*(2*k+1)+e//2}, v{16+4*(2*k)+e//2}, {sel}')
        a.e(f'buffer_store_dwordx4 v[{o}:{o+3}], v7, s[40:43], 0 offen')
        a.e('v_add_u32 v7, s34, v7')
        a.e('s_nop 1')
    a.e('s_endpgm')
    return a.text()
```

```python
from lib import *
CS = 4160 + 48
KB = 64
UB = KB + 16 * CS
K2_LDS = UB + 512 + 4096

def gen_k2():
    a = Asm()
    a.e('s_cmp_ge_u32 s2, 512')
    a.e('s_cbranch_scc1 K2_END')
    a.e('s_load_dwordx2 s[8:9], s[0:1], 64')
    a.e('s_load_dwordx2 s[32:33], s[0:1], 112')
    a.e('v_lshrrev_b32 v1, 6, v0')
    a.e('s_nop 1')
    a.e('v_readfirstlane_b32 s3, v1')
    a.e('v_and_b32 v1, 63, v0')
    a.e('s_waitcnt lgkmcnt(0)')
    a.srd_off(36, 32, WS_KC, 0x200000)
    a.srd_off(40, 32, WS_UT, 0x200000)
    a.srd_off(44, 32, WS_XT, 0x200000)
    a.srd_off(48, 32, WS_HT, 0x200000)
    a.srd(52, 8, 1024)
    a.e('s_lshl_b32 s4, s2, 12')
    a.e('v_lshlrev_b32 v2, 4, v0')
    a.e('v_add_u32 v3, s4, v2')
    a.e('buffer_load_dwordx4 v[8:11], v3, s[40:43], 0 offen')
    a.e('s_lshl_b32 s5, s2, 1')
    a.e('v_mov_b32 v4, s5')
    a.e('buffer_load_ushort v6, v4, s[52:55], 0 offen')
    for r in range(4):
        a.e(f'v_mov_b32 v{12+r}, 0')
    a.e('v_cmp_gt_u32 vcc, 32, v0')
    a.e('s_and_saveexec_b64 s[6:7], vcc')
    a.e(f'v_add_u32 v7, {UB}, v2')
    a.e('ds_write_b128 v7, v[12:15]')
    a.e('s_mov_b64 exec, s[6:7]')
    def build(tau_reg):
        a.e(f'v_lshlrev_b32 v16, 3, v{tau_reg}')
        a.e('v_sub_u32 v16, 2055, v16')
        for y in range(15):
            a.e(f'''
            v_subrev_u32 v17, {y}, v16
            v_cvt_f32_i32 v18, v17
            v_cvt_pk_bf16_f32 v18, v18, v18
            v_and_b32 v18, 0xffff, v18
            v_subrev_u32 v18, 17024, v18
            v_cmp_gt_u32 vcc, 128, v17
            s_nop 1
            v_cndmask_b32 v18, v18, v17, vcc
            v_lshlrev_b32 v18, 2, v18
            v_add_u32 v18, s4, v18
            v_cmp_gt_u32 vcc, 2048, v17
            v_mov_b32 v19, 0x7ffffff0
            s_nop 0
            v_cndmask_b32 v18, v19, v18, vcc
            buffer_load_dword v{32+y}, v18, s[36:39], 0 offen
            ''')
        a.e('v_mov_b32 v47, 0')
        a.e('s_waitcnt vmcnt(0)')
        for k in range(8):
            a.e(f'v_cvt_pk_bf16_f32 v{48+k}, v{32+2*k}, v{33+2*k}')
        for k in range(8):
            a.e(f'v_lshlrev_b32 v20, 16, v{48+k}')
            a.e(f'v_and_b32 v21, 0xffff0000, v{48+k}')
            a.e(f'v_sub_f32 v20, v{32+2*k}, v20')
            a.e(f'v_sub_f32 v21, v{33+2*k}, v21')
            a.e(f'v_cvt_pk_bf16_f32 v{56+k}, v20, v21')
        a.e(f'v_lshlrev_b32 v22, 4, v{tau_reg}')
        for part in range(2):
            P = 48 + 8 * part
            for s in range(8):
                y0 = 7 - s
                off = KB + (8 * part + s) * CS
                if y0 % 2 == 0:
                    k = y0 // 2
                    a.e(f'ds_write_b128 v22, v[{P+k}:{P+k+3}] offset:{off}') if (P + k) % 2 == 0 else None
                    if (P + k) % 2 != 0:
                        for i in range(4):
                            a.e(f'v_mov_b32 v{24+i}, v{P+k+i}')
                        a.e(f'ds_write_b128 v22, v[24:27] offset:{off}')
                else:
                    k = y0 // 2
                    for i in range(4):
                        a.e(f'v_alignbit_b32 v{28+i}, v{P+k+i+1}, v{P+k+i}, 16')
                    a.e(f'ds_write_b128 v22, v[28:31] offset:{off}')
    build(0)
    a.e('v_add_u32 v5, 256, v0')
    a.e('v_cmp_gt_u32 vcc, 4, v0')
    a.e('s_and_saveexec_b64 s[6:7], vcc')
    build(5)
    a.e('s_mov_b64 exec, s[6:7]')
    a.e(f'v_add_u32 v7, {UB}, v2')
    a.e('ds_write_b128 v7, v[8:11] offset:512')
    a.e('s_waitcnt lgkmcnt(0)')
    a.e('s_barrier')
    a.e('v_and_b32 v2, 15, v1')
    a.e('v_lshrrev_b32 v3, 4, v1')
    a.e('v_and_b32 v4, 7, v1')
    a.e('v_mul_u32_u24 v5, v4, ' + str(CS)) if False else None
    a.e(f's_mov_b32 s6, {CS}')
    a.e('v_mul_lo_u32 v5, v4, s6')
    a.e('v_lshrrev_b32 v7, 3, v2')
    a.e('v_sub_u32 v7, v3, v7')
    a.e('v_lshlrev_b32 v7, 4, v7')
    a.e('v_add_u32 v5, v5, v7')
    a.e(f'v_add_u32 v5, {KB + 4096 - 32}, v5')
    a.e('v_lshlrev_b32 v7, 5, v2')
    a.e('v_lshl_add_u32 v7, v3, 4, v7')
    a.e(f'v_add_u32 v7, {UB+512-32}, v7')
    a.e('s_lshl_b32 s6, s3, 9')
    a.e('v_add_u32 v8, s6, v7')
    a.e('s_sub_u32 s7, 7, s3')
    a.e('s_lshl_b32 s7, s7, 9')
    a.e('v_add_u32 v9, s7, v7')
    for r in range(8):
        a.e(f'v_mov_b32 v{16+r}, 0')
    LO = 8 * CS
    def reads(S, small):
        a.e(f'ds_read_b128 v[{S}:{S+3}], v5')
        a.e(f'ds_read_b128 v[{S+4}:{S+7}], v5 offset:{LO}')
        a.e(f'ds_read_b128 v[{S+8}:{S+11}], v9')
        if small:
            a.e(f'ds_read_b128 v[{S+12}:{S+15}], v8')
    def adv():
        a.e('v_subrev_u32 v5, 64, v5')
        a.e('v_subrev_u32 v8, 64, v8')
        a.e('v_subrev_u32 v9, 64, v9')
    def mm(S, small):
        a.e(f'v_mfma_f32_16x16x32_bf16 v[20:23], v[{S}:{S+3}], v[{S+8}:{S+11}], v[20:23]')
        if small:
            a.e(f'v_mfma_f32_16x16x32_bf16 v[16:19], v[{S}:{S+3}], v[{S+12}:{S+15}], v[16:19]')
        a.e(f'v_mfma_f32_16x16x32_bf16 v[20:23], v[{S+4}:{S+7}], v[{S+8}:{S+11}], v[20:23]')
        if small:
            a.e(f'v_mfma_f32_16x16x32_bf16 v[16:19], v[{S+4}:{S+7}], v[{S+12}:{S+15}], v[16:19]')
    reads(32, True)
    a.e('s_lshl_b32 s8, s3, 2')
    a.e('s_add_u32 s8, s8, 4')
    a.label('K2_L1')
    adv(); reads(48, True)
    a.e('s_waitcnt lgkmcnt(4)')
    mm(32, True)
    adv(); reads(32, True)
    a.e('s_waitcnt lgkmcnt(4)')
    mm(48, True)
    a.e('s_sub_u32 s8, s8, 1')
    a.e('s_cmp_lg_u32 s8, 0')
    a.e('s_cbranch_scc1 K2_L1')
    a.e('s_lshl_b32 s8, s3, 3')
    a.e('s_sub_u32 s8, 28, s8')
    a.label('K2_L2')
    adv(); reads(48, False)
    a.e('s_waitcnt lgkmcnt(3)')
    mm(32, False)
    adv(); reads(32, False)
    a.e('s_waitcnt lgkmcnt(3)')
    mm(48, False)
    a.e('s_sub_u32 s8, s8, 1')
    a.e('s_cmp_lg_u32 s8, 0')
    a.e('s_cbranch_scc1 K2_L2')
    a.e('s_waitcnt lgkmcnt(0)')
    a.e('v_lshlrev_b32 v7, 5, v2')
    a.e('v_lshl_add_u32 v7, v3, 3, v7')
    a.e('v_add_u32 v7, s4, v7')
    a.e('v_add_u32 v8, s6, v7')
    a.e('v_add_u32 v9, s7, v7')
    a.e('buffer_load_dwordx2 v[32:33], v8, s[40:43], 0 offen')
    a.e('buffer_load_dwordx2 v[34:35], v8, s[44:47], 0 offen')
    a.e('buffer_load_dwordx2 v[36:37], v9, s[40:43], 0 offen')
    a.e('buffer_load_dwordx2 v[38:39], v9, s[44:47], 0 offen')
    a.e('v_lshlrev_b32 v6, 16, v6')
    a.e('s_nop 7')
    a.e('s_waitcnt vmcnt(0)')
    for (acc, U, X, adr) in ((16, 32, 34, 8), (20, 36, 38, 9)):
        for r in range(4):
            op = 'v_lshlrev_b32 v40, 16, ' if r % 2 == 0 else 'v_and_b32 v40, 0xffff0000, '
            a.e(op + f'v{U + r//2}')
            op = 'v_lshlrev_b32 v41, 16, ' if r % 2 == 0 else 'v_and_b32 v41, 0xffff0000, '
            a.e(op + f'v{X + r//2}')
            a.e(f'''
            v_mul_f32 v40, v40, v6
            v_cvt_pk_bf16_f32 v40, v40, v40
            v_and_b32 v40, 0xffff0000, v40
            v_cvt_pk_bf16_f32 v42, v{acc+r}, v{acc+r}
            v_and_b32 v42, 0xffff0000, v42
            v_add_f32 v40, v40, v42
            v_cvt_pk_bf16_f32 v40, v40, v40
            v_and_b32 v40, 0xffff0000, v40
            v_add_f32 v{44+r}, v40, v41
            ''')
        a.e('v_cvt_pk_bf16_f32 v48, v44, v45')
        a.e('v_cvt_pk_bf16_f32 v49, v46, v47')
        a.e(f'buffer_store_dwordx2 v[48:49], v{adr}, s[48:51], 0 offen')
        a.e('s_nop 1')
    a.label('K2_END')
    a.e('s_endpgm')
    return a.text()
```

```python
from lib import *
K3_LDS = 65536
PART = 0
STAT = 8192

def gen_k3():
    a = Asm()
    a.e('s_cmp_ge_u32 s2, 224')
    a.e('s_cbranch_scc1 K3_END')
    a.e('s_load_dwordx2 s[32:33], s[0:1], 112')
    a.e('v_lshrrev_b32 v1, 6, v0')
    a.e('s_nop 1')
    a.e('v_readfirstlane_b32 s3, v1')
    a.e('v_and_b32 v1, 63, v0')
    a.e('s_mul_i32 s4, s2, 9363')
    a.e('s_lshr_b32 s4, s4, 16')
    a.e('s_mul_i32 s5, s4, 7')
    a.e('s_sub_u32 s5, s2, s5')
    a.e('s_waitcnt lgkmcnt(0)')
    a.srd_off(36, 32, WS_HT, 0x200000)
    a.srd_off(40, 32, WS_W1T, 512 * 1792 * 2)
    a.srd_off(44, 32, WS_G, 2048 * 1792 * 2)
    a.e('v_and_b32 v2, 31, v1')
    a.e('v_lshrrev_b32 v3, 5, v1')
    a.e('s_lshl_b32 s6, s5, 8')
    a.e('s_lshl_b32 s7, s3, 6')
    a.e('s_add_u32 s6, s6, s7')
    a.e('v_add_u32 v4, s6, v2')
    a.e('v_lshlrev_b32 v4, 10, v4')
    a.e('v_lshl_add_u32 v4, v3, 6, v4')
    a.e('v_add_u32 v5, 0x8000, v4')
    def loadB(S, kb):
        for t, vr in ((0, 4), (1, 5)):
            for s in range(4):
                r = S + 16 * t + 4 * s
                a.e(f'buffer_load_dwordx4 v[{r}:{r+3}], v{vr}, s[40:43], 0 offen offset:{128*kb+16*s}')
    loadB(64, 0)
    a.e('v_and_b32 v6, 7, v0')
    a.e('v_lshrrev_b32 v7, 3, v0')
    a.e('v_lshlrev_b32 v8, 13, v7')
    a.e('v_lshl_add_u32 v8, v6, 4, v8')
    a.e('s_lshl_b32 s8, s4, 7')
    a.e('v_add_u32 v8, s8, v8')
    R = lambda it, hf: 128 + 8 * it + 4 * hf
    for it in range(8):
        for hf in range(2):
            a.e(f'buffer_load_dwordx4 v[{R(it,hf)}:{R(it,hf)+3}], v8, s[36:39], 0 offen offset:{4096*hf}' if False else
                f'buffer_load_dwordx4 v[{R(it,hf)}:{R(it,hf)+3}], v8, s[36:39], 0 offen')
            a.e('v_add_u32 v8, 0x1000, v8' if hf == 0 else 'v_add_u32 v8, 0x3f000, v8')
    a.e('s_waitcnt vmcnt(0)')
    def unpack(dst, src, e):
        if e % 2 == 0:
            a.e(f'v_lshlrev_b32 v{dst}, 16, v{src + e//2}')
        else:
            a.e(f'v_and_b32 v{dst}, 0xffff0000, v{src + e//2}')
    def block_reduce(outregs):
        a.e('v_lshlrev_b32 v9, 8, v7')
        a.e('v_lshl_add_u32 v9, v6, 5, v9')
        a.e(f'ds_write_b128 v9, v[16:19] offset:{PART}')
        a.e(f'ds_write_b128 v9, v[20:23] offset:{PART+16}')
        a.e('s_waitcnt lgkmcnt(0)')
        a.e('s_barrier')
        a.e('v_cmp_gt_u32 vcc, 64, v0')
        a.e('s_and_saveexec_b64 s[10:11], vcc')
        a.e('v_lshlrev_b32 v10, 2, v0')
        for k in range(32):
            a.e(f'ds_read_b32 v{24+k}, v10 offset:{PART+256*k}')
        a.e('s_waitcnt lgkmcnt(0)')
        for k in range(1, 32):
            a.e(f'v_add_f32 v24, v24, v{24+k}')
        a.e(f'ds_write_b32 v10, v24 offset:{STAT}')
        a.e('s_mov_b64 exec, s[10:11]')
        a.e('s_waitcnt lgkmcnt(0)')
        a.e('s_barrier')
        a.e('v_lshlrev_b32 v10, 5, v6')
        a.e(f'ds_read_b128 v[{outregs}:{outregs+3}], v10 offset:{STAT}')
        a.e(f'ds_read_b128 v[{outregs+4}:{outregs+7}], v10 offset:{STAT+16}')
        a.e('s_waitcnt lgkmcnt(0)')
    for e in range(8):
        a.e(f'v_mov_b32 v{16+e}, 0')
    for it in range(8):
        for hf in range(2):
            for e in range(8):
                unpack(11, R(it, hf), e)
                a.e(f'v_add_f32 v{16+e}, v{16+e}, v11')
    block_reduce(56)
    a.e('s_mov_b32 s9, 0x3b000000')
    for e in range(8):
        a.e(f'v_mul_f32 v{56+e}, s9, v{56+e}')
        a.e(f'v_mov_b32 v{16+e}, 0')
    for it in range(8):
        for hf in range(2):
            for e in range(8):
                unpack(11, R(it, hf), e)
                a.e(f'v_sub_f32 v11, v11, v{56+e}')
                a.e(f'v_fma_f32 v{16+e}, v11, v11, v{16+e}')
    a.e('s_barrier')
    block_reduce(240)
    a.e('s_mov_b32 s10, 0x3727c5ac')
    for j in range(8):
        r = 240 + j
        a.e(f'''
        v_mul_f32 v{r}, s9, v{r}
        v_cvt_pk_bf16_f32 v{r}, v{r}, v{r}
        v_and_b32 v{r}, 0xffff0000, v{r}
        v_add_f32 v{r}, s10, v{r}
        v_cvt_pk_bf16_f32 v{r}, v{r}, v{r}
        v_and_b32 v{r}, 0xffff0000, v{r}
        v_sqrt_f32 v{r}, v{r}
        s_nop 0
        v_cvt_pk_bf16_f32 v{r}, v{r}, v{r}
        v_and_b32 v{r}, 0xffff0000, v{r}
        v_rcp_f32 v{r}, v{r}
        v_cvt_pk_bf16_f32 v{56+j}, v{56+j}, v{56+j}
        v_and_b32 v{56+j}, 0xffff0000, v{56+j}
        ''')
    a.e('s_barrier')
    a.e('v_lshrrev_b32 v12, 2, v7')
    a.e('v_and_b32 v13, 3, v7')
    a.e('v_lshlrev_b32 v13, 2, v13')
    a.e('v_lshl_add_u32 v13, v6, 13, v13')
    for e in range(8):
        a.e(f'v_xor_b32 v14, {e}, v6')
        a.e('v_xor_b32 v14, v14, v12')
        a.e(f'v_lshl_add_u32 v{24+e}, v14, 4, v13')
    for it in range(8):
        for e in range(8):
            unpack(11, R(it, 0), e)
            unpack(12, R(it, 1), e)
            a.e(f'''
            v_sub_f32 v11, v11, v{56+e}
            v_sub_f32 v12, v12, v{56+e}
            v_cvt_pk_bf16_f32 v11, v11, v12
            v_lshlrev_b32 v12, 16, v11
            v_and_b32 v11, 0xffff0000, v11
            v_mul_f32 v12, v12, v{240+e}
            v_mul_f32 v11, v11, v{240+e}
            v_cvt_pk_bf16_f32 v11, v12, v11
            ds_write_b32 v{24+e}, v11 offset:{1024*e + 128*it}
            ''')
    a.e('s_waitcnt lgkmcnt(0)')
    a.e('s_barrier')
    for rt in range(2):
        a.e(f'v_add_u32 v11, {32*rt}, v2')
        a.e('v_lshrrev_b32 v12, 3, v11')
        a.e('v_xor_b32 v12, v12, v11')
        a.e('v_and_b32 v12, 7, v12')
        for s in range(4):
            a.e(f'v_lshl_add_u32 v13, v3, 2, {s}')
            a.e('v_xor_b32 v13, v13, v12')
            a.e('v_lshlrev_b32 v13, 4, v13')
            a.e(f'v_lshl_add_u32 v{16+4*rt+s}, v11, 10, v13')
    for r in range(64):
        a.e(f'v_mov_b32 v{160+r}, 0')
    for kb in range(8):
        S = 64 if kb % 2 == 0 else 96
        Sn = 96 if kb % 2 == 0 else 64
        for rt in range(2):
            for s in range(4):
                r = 128 + 16 * rt + 4 * s
                a.e(f'ds_read_b128 v[{r}:{r+3}], v{16+4*rt+s} offset:{128*kb}')
        if kb < 7:
            loadB(Sn, kb + 1)
            a.e('s_waitcnt vmcnt(8) lgkmcnt(0)')
        else:
            a.e('s_waitcnt vmcnt(0) lgkmcnt(0)')
        for s in range(4):
            for rt in range(2):
                for ct in range(2):
                    acc = 160 + 16 * (2 * rt + ct)
                    a.e(f'v_mfma_f32_32x32x16_bf16 v[{acc}:{acc+15}], v[{128+16*rt+4*s}:{131+16*rt+4*s}], v[{S+16*ct+4*s}:{S+16*ct+4*s+3}], v[{acc}:{acc+15}]')
    a.e('s_nop 15')
    a.e('s_lshl_b32 s8, s4, 6')
    a.e('v_lshl_add_u32 v11, v3, 2, s8')
    a.e('s_movk_i32 s9, 3584')
    a.e('v_mul_lo_u32 v11, v11, s9')
    a.e('v_add_u32 v12, s6, v2')
    a.e('v_lshl_add_u32 v11, v12, 1, v11')
    for rt in range(2):
        for ct in range(2):
            acc = 160 + 16 * (2 * rt + ct)
            for r in range(16):
                row = 32 * rt + 8 * (r // 4) + (r % 4)
                off = row * 3584 + 64 * ct
                x = acc + r
                a.e(f'''
                v_cvt_pk_bf16_f32 v{x}, v{x}, v{x}
                v_and_b32 v{x}, 0xffff0000, v{x}
                v_mul_f32 v13, 0xbfb8aa3b, v{x}
                v_exp_f32 v13, v13
                s_nop 0
                v_add_f32 v13, 1.0, v13
                v_rcp_f32 v13, v13
                s_nop 0
                v_mul_f32 v{x}, v{x}, v13
                v_cvt_pk_bf16_f32 v{x}, v{x}, v{x}
                ''')
                a.e(f's_mov_b32 s12, {off}')
                a.e(f'buffer_store_short v{x}, v11, s[44:47], s12 offen')
    a.label('K3_END')
    a.e('s_endpgm')
    return a.text()

K4_LDS = 65536
def gen_k4():
    a = Asm()
    a.e('s_cmp_ge_u32 s2, 256')
    a.e('s_cbranch_scc1 K4_END')
    a.e('s_load_dwordx2 s[8:9], s[0:1], 96')
    a.e('s_load_dwordx2 s[32:33], s[0:1], 112')
    a.e('v_lshrrev_b32 v1, 6, v0')
    a.e('s_nop 1')
    a.e('v_readfirstlane_b32 s3, v1')
    a.e('v_and_b32 v1, 63, v0')
    a.e('s_lshr_b32 s4, s2, 3')
    a.e('s_lshl_b32 s4, s4, 6')
    a.e('s_and_b32 s5, s2, 7')
    a.e('s_lshl_b32 s5, s5, 6')
    a.e('s_waitcnt lgkmcnt(0)')
    a.srd_off(36, 32, WS_HT, 0x200000)
    a.srd_off(40, 32, WS_W2T, 512 * 1792 * 2)
    a.srd_off(44, 32, WS_G, 2048 * 1792 * 2)
    a.srd(48, 8, 0x200000)
    a.e('v_and_b32 v2, 31, v1')
    a.e('v_lshrrev_b32 v3, 5, v1')
    a.e('s_movk_i32 s9, 3584')
    a.e('s_mul_i32 s6, s3, 896')
    a.e('v_add_u32 v4, s4, v2')
    a.e('v_mul_lo_u32 v4, v4, s9')
    a.e('v_lshl_add_u32 v4, v3, 6, v4')
    a.e('v_add_u32 v4, s6, v4')
    a.e(f'v_add_u32 v5, {32*3584}, v4')
    a.e('v_add_u32 v6, s5, v2')
    a.e('v_mul_lo_u32 v6, v6, s9')
    a.e('v_lshl_add_u32 v6, v3, 6, v6')
    a.e('v_add_u32 v6, s6, v6')
    a.e(f'v_add_u32 v7, {32*3584}, v6')
    def load(S, kb):
        for t, (vr, srd) in enumerate(((4, 44), (5, 44), (6, 40), (7, 40))):
            for s in range(4):
                r = S + 16 * t + 4 * s
                a.e(f'buffer_load_dwordx4 v[{r}:{r+3}], v{vr}, s[{srd}:{srd+3}], 0 offen offset:{128*kb+16*s}')
    load(32, 0)
    for r in range(64):
        a.e(f'v_mov_b32 v{160+r}, 0')
    for kb in range(7):
        S = 32 if kb % 2 == 0 else 96
        Sn = 96 if kb % 2 == 0 else 32
        if kb < 6:
            load(Sn, kb + 1)
            a.e('s_waitcnt vmcnt(16)')
        else:
            a.e('s_waitcnt vmcnt(0)')
        for s in range(4):
            for rt in range(2):
                for ct in range(2):
                    acc = 160 + 16 * (2 * rt + ct)
                    A = S + 16 * rt + 4 * s
                    B = S + 32 + 16 * ct + 4 * s
                    a.e(f'v_mfma_f32_32x32x16_bf16 v[{acc}:{acc+15}], v[{A}:{A+3}], v[{B}:{B+3}], v[{acc}:{acc+15}]')
    a.e('s_nop 15')
    a.e('s_lshl_b32 s6, s3, 14')
    a.e('v_lshlrev_b32 v8, 10, v3')
    a.e('v_lshl_add_u32 v8, v2, 2, v8')
    a.e('v_add_u32 v8, s6, v8')
    for rt in range(2):
        for ct in range(2):
            acc = 160 + 16 * (2 * rt + ct)
            for r in range(16):
                row = 32 * rt + 8 * (r // 4) + (r % 4)
                a.e(f'ds_write_b32 v8, v{acc+r} offset:{row*256 + 128*ct}')
    a.e('v_lshrrev_b32 v9, 2, v0')
    a.e('v_and_b32 v10, 3, v0')
    a.e('v_lshlrev_b32 v10, 4, v10')
    a.e('v_add_u32 v11, s5, v10')
    a.e('v_lshlrev_b32 v11, 12, v11')
    a.e('v_add_u32 v12, s4, v9')
    a.e('v_lshl_add_u32 v11, v12, 1, v11')
    for e in range(16):
        a.e(f'buffer_load_ushort v{32+e}, v11, s[36:39], 0 offen')
        a.e('v_add_u32 v11, 0x1000, v11')
    a.e('s_waitcnt lgkmcnt(0)')
    a.e('s_barrier')
    a.e('v_lshlrev_b32 v13, 8, v9')
    a.e('v_lshl_add_u32 v13, v10, 2, v13')
    for w in range(4):
        for k in range(4):
            r = 64 + 16 * w + 4 * k
            a.e(f'ds_read_b128 v[{r}:{r+3}], v13 offset:{16384*w + 16*k}')
    a.e('s_waitcnt vmcnt(0) lgkmcnt(0)')
    for e in range(16):
        a.e(f'''
        v_add_f32 v{64+e}, v{64+e}, v{80+e}
        v_add_f32 v{96+e}, v{96+e}, v{112+e}
        v_add_f32 v{64+e}, v{64+e}, v{96+e}
        v_cvt_pk_bf16_f32 v{64+e}, v{64+e}, v{64+e}
        v_and_b32 v{64+e}, 0xffff0000, v{64+e}
        v_lshlrev_b32 v{32+e}, 16, v{32+e}
        v_add_f32 v{64+e}, v{64+e}, v{32+e}
        ''')
    for k in range(8):
        a.e(f'v_cvt_pk_bf16_f32 v{48+k}, v{64+2*k}, v{65+2*k}')
    a.e('v_lshlrev_b32 v14, 10, v12')
    a.e('v_add_u32 v15, s5, v10')
    a.e('v_lshl_add_u32 v14, v15, 1, v14')
    a.e('buffer_store_dwordx4 v[48:51], v14, s[48:51], 0 offen')
    a.e('buffer_store_dwordx4 v[52:55], v14, s[48:51], 0 offen offset:16')
    a.label('K4_END')
    a.e('s_endpgm')
    return a.text()
```

```python
class Asm:
    def __init__(self):
        self.lines = []
        self.lbl = 0
    def e(self, s):
        for l in s.strip('\n').split('\n'):
            self.lines.append('    ' + l.strip())
    def label(self, name):
        self.lines.append(name + ':')
    def newlabel(self, p='L'):
        self.lbl += 1
        return f'{p}_{self.lbl}'
    def raw(self, s):
        self.lines.append(s)
    def srd(self, d, base, nbytes):
        self.e(f's_mov_b32 s{d}, s{base}')
        self.e(f's_and_b32 s{d+1}, s{base+1}, 0xffff')
        self.e(f's_mov_b32 s{d+2}, {nbytes}')
        self.e(f's_mov_b32 s{d+3}, 0x00020000')
    def srd_off(self, d, base, off, nbytes):
        self.e(f's_add_u32 s{d}, s{base}, {off}')
        self.e(f's_addc_u32 s{d+1}, s{base+1}, 0')
        self.e(f's_and_b32 s{d+1}, s{d+1}, 0xffff')
        self.e(f's_mov_b32 s{d+2}, {nbytes}')
        self.e(f's_mov_b32 s{d+3}, 0x00020000')
    def text(self):
        return '\n'.join(self.lines) + '\n'

def kernel_header(name):
    return f'''.globl {name}
.p2align 8
.type {name},@function
{name}:
'''
def kernel_desc(name, vgpr, sgpr=102):
    acc = (vgpr + 3) // 4 * 4
    return f'''.amdhsa_kernel {name}
  .amdhsa_next_free_vgpr {vgpr}
  .amdhsa_next_free_sgpr {sgpr}
  .amdhsa_accum_offset {acc}
  .amdhsa_group_segment_fixed_size 0
  .amdhsa_kernarg_size 120
  .amdhsa_user_sgpr_count 2
  .amdhsa_user_sgpr_kernarg_segment_ptr 1
  .amdhsa_system_sgpr_workgroup_id_x 1
.end_amdhsa_kernel
'''
WS_UT = 0x000000
WS_XT = 0x200000
WS_KC = 0x400000
WS_W1T = 0x600000
WS_W2T = 0x800000
WS_HT = 0xA00000
WS_G = 0xC00000
```

```python
from lib import *
from k1 import gen_k1
from k2 import gen_k2, K2_LDS
from k34 import gen_k3, gen_k4, K3_LDS, K4_LDS
import sys
N = 'sequential_preLN__ssm_conv_s4__dense_activation_silu__prompt'
ref = open(f'cdna_kernels/{N}.s.ref').read().split('\n')
hdr = [l for l in ref if l.startswith(';') and '@launch' not in l]
out = '\n'.join(hdr) + '\n'
out += '; @launch kernel=k1_prep_kernel grid=(688,1,1) block=(256,1,1) lds=20736\n'
out += f'; @launch kernel=k2_conv_kernel grid=(512,1,1) block=(256,1,1) lds={K2_LDS}\n'
out += f'; @launch kernel=k3_ffn1_kernel grid=(224,1,1) block=(256,1,1) lds={K3_LDS}\n'
out += f'; @launch kernel=k4_ffn2_kernel grid=(256,1,1) block=(256,1,1) lds={K4_LDS}\n'
out += '.amdgcn_target "amdgcn-amd-amdhsa--gfx950"\n.text\n'
ks = [('k1_prep_kernel', gen_k1, 128), ('k2_conv_kernel', gen_k2, 64), ('k3_ffn1_kernel', gen_k3, 224), ('k4_ffn2_kernel', gen_k4, 224)]
for n, g, v in ks:
    out += kernel_header(n) + g()
out += '.section .rodata,"a"\n'
for n, g, v in ks:
    out += '.p2align 6\n' + kernel_desc(n, v)
open(f'cdna_kernels/{N}.s', 'w').write(out)
```

```python
from lib import *

def wave_reduce(a, regs, sdst):
    for sh in (1, 2, 4, 8):
        a.e('s_nop 1')
        for r in regs:
            a.e(f'v_add_f32_dpp v{r}, v{r}, v{r} row_shr:{sh} row_mask:0xf bank_mask:0xf bound_ctrl:0')
    a.e('s_nop 1')
    for r in regs:
        a.e(f'v_add_f32_dpp v{r}, v{r}, v{r} row_bcast:15 row_mask:0xa bank_mask:0xf')
    a.e('s_nop 1')
    for r in regs:
        a.e(f'v_add_f32_dpp v{r}, v{r}, v{r} row_bcast:31 row_mask:0xc bank_mask:0xf')
    a.e('s_nop 1')
    for i, r in enumerate(regs):
        a.e(f'v_readlane_b32 s{sdst+i}, v{r}, 63')
    a.e('s_nop 3')

def gen_k1():
    a = Asm()
    a.e('s_load_dwordx16 s[8:23], s[0:1], 0')
    a.e('s_load_dwordx8 s[24:31], s[0:1], 64')
    a.e('s_load_dwordx2 s[32:33], s[0:1], 112')
    a.e('v_lshrrev_b32 v1, 6, v0')
    a.e('s_nop 1')
    a.e('v_readfirstlane_b32 s3, v1')
    a.e('v_and_b32 v1, 63, v0')
    a.e('s_waitcnt lgkmcnt(0)')
    a.e('s_cmp_lt_u32 s2, 512')
    a.e('s_cbranch_scc1 K1_KGEN')
    a.e('s_cmp_lt_u32 s2, 576')
    a.e('s_cbranch_scc1 K1_LN')
    a.e('s_cmp_lt_u32 s2, 688')
    a.e('s_cbranch_scc1 K1_TR')
    a.e('s_endpgm')

    a.label('K1_KGEN')
    for i in range(6):
        a.srd(36 + 4 * i, 10 + 2 * i, 131072)
    a.srd(60, 22, 1024)
    a.e('v_and_b32 v2, 127, v0')
    a.e('v_lshlrev_b32 v3, 1, v2')
    a.e('s_lshl_b32 s4, s2, 8')
    a.e('v_add_u32 v3, s4, v3')
    a.e('s_lshl_b32 s5, s2, 1')
    a.e('v_mov_b32 v4, s5')
    for i in range(6):
        a.e(f'buffer_load_ushort v{8+i}, v3, s[{36+4*i}:{39+4*i}], 0 offen')
    a.e('buffer_load_ushort v14, v4, s[60:63], 0 offen')
    a.e('s_waitcnt vmcnt(0)')
    for i in range(7):
        a.e(f'v_lshlrev_b32 v{8+i}, 16, v{8+i}')
    a.e('v_mul_f32 v14, 0x3fb8aa3b, v14')
    a.e('v_exp_f32 v14, v14')
    a.e('s_nop 1')
    a.e('v_cvt_pk_bf16_f32 v14, v14, v14')
    a.e('v_and_b32 v14, 0xffff0000, v14')
    a.e('v_mul_f32 v16, v14, v8')
    a.e('v_mul_f32 v17, v14, v9')
    a.e('v_mul_f32 v10, v14, v10')
    a.e('v_mul_f32 v11, v14, v11')
    a.e('v_mul_f32 v16, 0x3fb8aa3b, v16')
    a.e('v_mul_f32 v17, 0.15915494, v17')
    a.e('v_mul_f32 v18, v12, v10')
    a.e('v_fma_f32 v18, -v13, v11, v18')
    a.e('v_mul_f32 v19, v12, v11')
    a.e('v_fma_f32 v19, v13, v10, v19')
    a.e('v_mov_b32 v20, v16')
    a.e('v_mov_b32 v21, v17')
    a.e('v_mov_b32 v22, v19')
    a.e('v_mov_b32 v23, v18')
    a.e('v_sub_f32 v19, 0, v19')
    a.e('v_lshlrev_b32 v5, 5, v2')
    a.e('ds_write_b128 v5, v[16:19]')
    a.e('ds_write_b128 v5, v[20:23] offset:16')
    a.e('s_waitcnt lgkmcnt(0)')
    a.e('s_barrier')
    a.e('v_and_b32 v2, 15, v1')
    a.e('v_lshrrev_b32 v3, 4, v1')
    a.e('v_lshlrev_b32 v5, 4, v3')
    a.e('v_lshlrev_b32 v6, s3, v2')
    a.e('v_cvt_f32_u32 v7, v6')
    a.e('v_add_u32 v6, 8, v2')
    a.e('s_cmp_eq_u32 s3, 0')
    a.e('s_cselect_b32 s4, 0, 1')
    a.e('v_mov_b32 v8, s4')
    a.e('v_cmp_eq_u32 vcc, 0, v8')
    a.e('s_nop 1')
    a.e('v_cndmask_b32 v6, v6, v2, vcc')
    a.e('v_lshlrev_b32 v6, s3, v6')
    a.e('v_lshlrev_b32 v6, 4, v6')
    a.e('v_cvt_f32_u32 v6, v6')
    a.e('v_and_b32 v8, 1, v3')
    a.e('v_cvt_f32_u32 v8, v8')
    a.e('v_add_f32 v8, 1.0, v8')
    a.e('v_mul_f32 v8, 0x3e800000, v8')
    for r in range(4):
        a.e(f'v_mov_b32 v{24+r}, 0')
    a.e('ds_read_b128 v[32:35], v5')
    a.e('s_mov_b32 s8, 32')
    a.label('K1_KL')
    for t in range(2):
        p = 32 if t % 2 == 0 else 36
        pn = 36 if t % 2 == 0 else 32
        a.e('s_waitcnt lgkmcnt(0)')
        a.e(f'ds_read_b128 v[{pn}:{pn+3}], v5 offset:{64*(t+1)}')
        a.e(f'''
        v_mul_f32 v40, v{p}, v6
        v_mul_f32 v41, v{p}, v7
        v_fma_f32 v42, v{p+1}, v6, v8
        v_mul_f32 v43, v{p+1}, v7
        v_exp_f32 v40, v40
        v_exp_f32 v41, v41
        v_fract_f32 v42, v42
        v_fract_f32 v43, v43
        v_sin_f32 v42, v42
        v_cos_f32 v44, v43
        v_sin_f32 v43, v43
        s_nop 0
        v_mul_f32 v40, v40, v42
        v_mul_f32 v44, v{p+2}, v44
        v_fma_f32 v44, v{p+3}, v43, v44
        v_mul_f32 v41, v41, v44
        s_nop 1
        v_mfma_f32_16x16x4_f32 v[24:27], v40, v41, v[24:27]
        ''')
    a.e('v_add_u32 v5, 128, v5')
    a.e('s_sub_u32 s8, s8, 1')
    a.e('s_cmp_lg_u32 s8, 0')
    a.e('s_cbranch_scc1 K1_KL')
    a.e('s_waitcnt lgkmcnt(0)')
    a.e('s_nop 15')
    a.srd_off(36, 32, WS_KC, 0x200000)
    a.e('s_add_u32 s4, s3, 1')
    a.e('s_lshl_b32 s4, s4, 7')
    a.e('s_cmp_eq_u32 s3, 0')
    a.e('s_cselect_b32 s4, 0, s4')
    a.e('s_cselect_b32 s5, 16, 8')
    a.e('s_cmp_eq_u32 s3, 3')
    a.e('s_cselect_b32 s5, 9, s5')
    a.e('s_lshl_b32 s6, s2, 10')
    a.e('s_add_u32 s4, s4, s6')
    a.e('v_lshlrev_b32 v9, 2, v3')
    a.e('v_lshlrev_b32 v10, 4, v9')
    a.e('v_add_u32 v10, v10, v2')
    a.e('v_add_u32 v10, s4, v10')
    a.e('v_lshlrev_b32 v10, 2, v10')
    for r in range(4):
        a.e(f'v_add_u32 v11, {r}, v9')
        a.e('v_cmp_gt_u32 vcc, s5, v11')
        a.e('s_and_saveexec_b64 s[6:7], vcc')
        a.e(f'buffer_store_dword v{24+r}, v10, s[36:39], 0 offen offset:{64*r}')
        a.e('s_mov_b64 exec, s[6:7]')
    a.e('s_endpgm')

    a.label('K1_LN')
    a.srd(36, 8, 0x200000)
    a.srd_off(40, 32, WS_UT, TSZ)
    a.srd_off(44, 32, WS_XT, TSZ)
    a.e('s_sub_u32 s4, s2, 512')
    a.e('s_lshl_b32 s4, s4, 5')
    a.e('s_lshl_b32 s5, s3, 3')
    a.e('s_add_u32 s4, s4, s5')
    a.e('s_lshl_b32 s5, s4, 10')
    a.e('v_lshlrev_b32 v2, 4, v1')
    a.e('v_add_u32 v2, s5, v2')
    for j in range(8):
        a.e(f'buffer_load_dwordx4 v[{16+4*j}:{19+4*j}], v2, s[36:39], 0 offen')
        a.e('v_add_u32 v2, 0x400, v2')
    a.e('s_waitcnt vmcnt(0)')
    X = lambda j, e: 64 + 8 * j + e
    for j in range(8):
        for k in range(4):
            a.e(f'v_lshlrev_b32 v{X(j,2*k)}, 16, v{16+4*j+k}')
            a.e(f'v_and_b32 v{X(j,2*k+1)}, 0xffff0000, v{16+4*j+k}')
    for j in range(8):
        a.e(f'v_add_f32 v{8+j}, v{X(j,0)}, v{X(j,1)}')
    for e in range(2, 8):
        for j in range(8):
            a.e(f'v_add_f32 v{8+j}, v{8+j}, v{X(j,e)}')
    wave_reduce(a, list(range(8, 16)), 48)
    a.e('s_mov_b32 s6, 0x3b000000')
    for j in range(8):
        a.e(f'v_mov_b32 v{48+j}, s{48+j}')
    for j in range(8):
        a.e(f'v_mul_f32 v{48+j}, s6, v{48+j}')
    for j in range(8):
        a.e(f'v_mov_b32 v{8+j}, 0')
    for e in range(8):
        for j in range(8):
            a.e(f'v_sub_f32 v{56}, v{X(j,e)}, v{48+j}')
            a.e(f'v_fma_f32 v{8+j}, v56, v56, v{8+j}')
    wave_reduce(a, list(range(8, 16)), 56)
    a.e('s_mov_b32 s7, 0x3727c5ac')
    for j in range(8):
        a.e(f'v_mov_b32 v{8+j}, s{56+j}')
    for j in range(8):
        r = 8 + j
        a.e(f'''
        v_mul_f32 v{r}, s6, v{r}
        v_cvt_pk_bf16_f32 v{r}, v{r}, v{r}
        v_and_b32 v{r}, 0xffff0000, v{r}
        v_add_f32 v{r}, s7, v{r}
        v_cvt_pk_bf16_f32 v{r}, v{r}, v{r}
        v_and_b32 v{r}, 0xffff0000, v{r}
        v_sqrt_f32 v{r}, v{r}
        s_nop 0
        v_cvt_pk_bf16_f32 v{r}, v{r}, v{r}
        v_and_b32 v{r}, 0xffff0000, v{r}
        v_rcp_f32 v{r}, v{r}
        v_cvt_pk_bf16_f32 v{48+j}, v{48+j}, v{48+j}
        v_and_b32 v{48+j}, 0xffff0000, v{48+j}
        ''')
    U = lambda j, e: 128 + 8 * j + e
    for j in range(8):
        for e in range(8):
            a.e(f'v_sub_f32 v{U(j,e)}, v{X(j,e)}, v{48+j}')
    for j in range(8):
        for e in range(8):
            a.e(f'v_cvt_pk_bf16_f32 v{U(j,e)}, v{U(j,e)}, v{U(j,e)}')
    for j in range(8):
        for e in range(8):
            a.e(f'v_and_b32 v{U(j,e)}, 0xffff0000, v{U(j,e)}')
    for j in range(8):
        for e in range(8):
            a.e(f'v_mul_f32 v{U(j,e)}, v{U(j,e)}, v{8+j}')
    a.e(f's_mov_b32 s8, {8*ROW}')
    a.e('v_mul_lo_u32 v2, v1, s8')
    a.e('s_lshl_b32 s5, s4, 1')
    a.e('v_add_u32 v2, s5, v2')
    for e in range(8):
        o = 192 + 8 * (e % 2)
        for k in range(4):
            a.e(f'v_cvt_pk_bf16_f32 v{o+k}, v{U(2*k,e)}, v{U(2*k+1,e)}')
            a.e(f'v_cvt_pk_bf16_f32 v{o+4+k}, v{X(2*k,e)}, v{X(2*k+1,e)}')
        a.e(f'buffer_store_dwordx4 v[{o}:{o+3}], v2, s[40:43], 0 offen')
        a.e(f'buffer_store_dwordx4 v[{o+4}:{o+7}], v2, s[44:47], 0 offen')
        a.e(f'v_add_u32 v2, {ROW}, v2')
        a.e('s_nop 1')
    a.e('s_endpgm')

    a.label('K1_TR')
    a.e('s_sub_u32 s4, s2, 576')
    a.e('s_cmp_lt_u32 s4, 56')
    a.e('s_cbranch_scc0 K1_TR2')
    a.srd(36, 28, 512 * 1792 * 2)
    a.srd_off(40, 32, WS_W1T, 512 * 1792 * 2)
    a.e('s_lshl_b32 s4, s4, 2')
    a.e('s_add_u32 s4, s4, s3')
    a.e('s_mul_i32 s5, s4, 2341')
    a.e('s_lshr_b32 s5, s5, 16')
    a.e('s_mul_i32 s6, s5, 28')
    a.e('s_sub_u32 s6, s4, s6')
    a.e('s_mov_b32 s7, 3584')
    a.e('s_mov_b32 s34, 1024')
    a.e('s_branch K1_TRGO')
    a.label('K1_TR2')
    a.srd(36, 30, 512 * 1792 * 2)
    a.srd_off(40, 32, WS_W2T, 512 * 1792 * 2)
    a.e('s_sub_u32 s4, s4, 56')
    a.e('s_lshl_b32 s4, s4, 2')
    a.e('s_add_u32 s4, s4, s3')
    a.e('s_lshr_b32 s5, s4, 3')
    a.e('s_and_b32 s6, s4, 7')
    a.e('s_mov_b32 s7, 1024')
    a.e('s_mov_b32 s34, 3584')
    a.label('K1_TRGO')
    a.e('v_and_b32 v2, 7, v1')
    a.e('v_lshrrev_b32 v3, 3, v1')
    a.e('s_lshl_b32 s5, s5, 6')
    a.e('s_lshl_b32 s6, s6, 6')
    a.e('v_lshlrev_b32 v4, 3, v3')
    a.e('v_add_u32 v4, s5, v4')
    a.e('v_lshlrev_b32 v5, 3, v2')
    a.e('v_add_u32 v5, s6, v5')
    a.e('v_mul_lo_u32 v6, v4, s7')
    a.e('v_lshl_add_u32 v6, v5, 1, v6')
    a.e('v_mul_lo_u32 v7, v5, s34')
    a.e('v_lshl_add_u32 v7, v4, 1, v7')
    for j in range(8):
        a.e(f'buffer_load_dwordx4 v[{16+4*j}:{19+4*j}], v6, s[36:39], 0 offen')
        a.e('v_add_u32 v6, s7, v6')
    a.e('s_mov_b32 s8, 0x05040100')
    a.e('s_mov_b32 s9, 0x07060302')
    a.e('s_waitcnt vmcnt(0)')
    for e in range(8):
        o = 64 + 4 * (e % 2)
        sel = 's8' if e % 2 == 0 else 's9'
        for k in range(4):
            a.e(f'v_perm_b32 v{o+k}, v{16+4*(2*k+1)+e//2}, v{16+4*(2*k)+e//2}, {sel}')
        a.e(f'buffer_store_dwordx4 v[{o}:{o+3}], v7, s[40:43], 0 offen')
        a.e('v_add_u32 v7, s34, v7')
        a.e('s_nop 1')
    a.e('s_endpgm')
    return a.text()
```

```python
from lib import *
CS = 4160 + 48
KB = 64
UB = KB + 16 * CS
K2_LDS = UB + 512 + 4096

def gen_k2():
    a = Asm()
    a.e('s_cmp_ge_u32 s2, 512')
    a.e('s_cbranch_scc1 K2_END')
    a.e('s_load_dwordx2 s[8:9], s[0:1], 64')
    a.e('s_load_dwordx2 s[32:33], s[0:1], 112')
    a.e('v_lshrrev_b32 v1, 6, v0')
    a.e('s_nop 1')
    a.e('v_readfirstlane_b32 s3, v1')
    a.e('v_and_b32 v1, 63, v0')
    a.e('s_waitcnt lgkmcnt(0)')
    a.srd_off(36, 32, WS_KC, 0x200000)
    a.srd_off(40, 32, WS_UT, TSZ)
    a.srd_off(44, 32, WS_XT, TSZ)
    a.srd_off(48, 32, WS_HT, TSZ)
    a.srd(52, 8, 1024)
    a.e('s_lshl_b32 s4, s2, 12')
    a.e(f's_mul_i32 s10, s2, {ROW}')
    a.e('v_lshlrev_b32 v2, 4, v0')
    a.e('v_add_u32 v3, s10, v2')
    a.e('buffer_load_dwordx4 v[8:11], v3, s[40:43], 0 offen')
    a.e('s_lshl_b32 s5, s2, 1')
    a.e('v_mov_b32 v4, s5')
    a.e('buffer_load_ushort v6, v4, s[52:55], 0 offen')
    for r in range(4):
        a.e(f'v_mov_b32 v{12+r}, 0')
    a.e('v_cmp_gt_u32 vcc, 32, v0')
    a.e('s_and_saveexec_b64 s[6:7], vcc')
    a.e(f'v_add_u32 v7, {UB}, v2')
    a.e('ds_write_b128 v7, v[12:15]')
    a.e('s_mov_b64 exec, s[6:7]')
    def build(tau_reg):
        a.e(f'v_lshlrev_b32 v16, 3, v{tau_reg}')
        a.e('v_sub_u32 v16, 2055, v16')
        for y in range(15):
            a.e(f'''
            v_subrev_u32 v17, {y}, v16
            v_cvt_f32_i32 v18, v17
            v_cvt_pk_bf16_f32 v18, v18, v18
            v_and_b32 v18, 0xffff, v18
            v_subrev_u32 v18, 17024, v18
            v_cmp_gt_u32 vcc, 128, v17
            s_nop 1
            v_cndmask_b32 v18, v18, v17, vcc
            v_lshlrev_b32 v18, 2, v18
            v_add_u32 v18, s4, v18
            v_cmp_gt_u32 vcc, 2048, v17
            v_mov_b32 v19, 0x7ffffff0
            s_nop 0
            v_cndmask_b32 v18, v19, v18, vcc
            buffer_load_dword v{32+y}, v18, s[36:39], 0 offen
            ''')
        a.e('v_mov_b32 v47, 0')
        a.e('s_waitcnt vmcnt(0)')
        for k in range(8):
            a.e(f'v_cvt_pk_bf16_f32 v{48+k}, v{32+2*k}, v{33+2*k}')
        for k in range(8):
            a.e(f'v_lshlrev_b32 v20, 16, v{48+k}')
            a.e(f'v_and_b32 v21, 0xffff0000, v{48+k}')
            a.e(f'v_sub_f32 v20, v{32+2*k}, v20')
            a.e(f'v_sub_f32 v21, v{33+2*k}, v21')
            a.e(f'v_cvt_pk_bf16_f32 v{56+k}, v20, v21')
        a.e(f'v_lshlrev_b32 v22, 4, v{tau_reg}')
        for part in range(2):
            P = 48 + 8 * part
            for s in range(8):
                y0 = 7 - s
                off = KB + (8 * part + s) * CS
                if y0 % 2 == 0:
                    k = y0 // 2
                    a.e(f'ds_write_b128 v22, v[{P+k}:{P+k+3}] offset:{off}') if (P + k) % 2 == 0 else None
                    if (P + k) % 2 != 0:
                        for i in range(4):
                            a.e(f'v_mov_b32 v{24+i}, v{P+k+i}')
                        a.e(f'ds_write_b128 v22, v[24:27] offset:{off}')
                else:
                    k = y0 // 2
                    for i in range(4):
                        a.e(f'v_alignbit_b32 v{28+i}, v{P+k+i+1}, v{P+k+i}, 16')
                    a.e(f'ds_write_b128 v22, v[28:31] offset:{off}')
    a.e('v_mov_b32 v5, v0')
    a.e('s_mov_b32 s11, 0')
    a.label('K2_BL')
    build(5)
    a.e('s_waitcnt lgkmcnt(0)')
    a.e('v_add_u32 v5, 256, v0')
    a.e('v_cmp_gt_u32 vcc, 4, v0')
    a.e('s_and_b64 exec, exec, vcc')
    a.e('s_add_u32 s11, s11, 1')
    a.e('s_cmp_lt_u32 s11, 2')
    a.e('s_cbranch_scc1 K2_BL')
    a.e('s_mov_b64 exec, -1')
    a.e(f'v_add_u32 v7, {UB}, v2')
    a.e('ds_write_b128 v7, v[8:11] offset:512')
    a.e('s_waitcnt lgkmcnt(0)')
    a.e('s_barrier')
    a.e('v_and_b32 v2, 15, v1')
    a.e('v_lshrrev_b32 v3, 4, v1')
    a.e('v_and_b32 v4, 7, v1')
    a.e('v_mul_u32_u24 v5, v4, ' + str(CS)) if False else None
    a.e(f's_mov_b32 s6, {CS}')
    a.e('v_mul_lo_u32 v5, v4, s6')
    a.e('v_lshrrev_b32 v7, 3, v2')
    a.e('v_sub_u32 v7, v3, v7')
    a.e('v_lshlrev_b32 v7, 4, v7')
    a.e('v_add_u32 v5, v5, v7')
    a.e(f'v_add_u32 v5, {KB + 4096 - 32}, v5')
    a.e('v_lshlrev_b32 v7, 5, v2')
    a.e('v_lshl_add_u32 v7, v3, 4, v7')
    a.e(f'v_add_u32 v7, {UB+512-32}, v7')
    a.e('s_lshl_b32 s6, s3, 9')
    a.e('v_add_u32 v8, s6, v7')
    a.e('s_sub_u32 s7, 7, s3')
    a.e('s_lshl_b32 s7, s7, 9')
    a.e('v_add_u32 v9, s7, v7')
    for r in range(8):
        a.e(f'v_mov_b32 v{16+r}, 0')
    LO = 8 * CS
    def reads(S, small):
        a.e(f'ds_read_b128 v[{S}:{S+3}], v5')
        a.e(f'ds_read_b128 v[{S+4}:{S+7}], v5 offset:{LO}')
        a.e(f'ds_read_b128 v[{S+8}:{S+11}], v9')
        if small:
            a.e(f'ds_read_b128 v[{S+12}:{S+15}], v8')
    def adv():
        a.e('v_subrev_u32 v5, 64, v5')
        a.e('v_subrev_u32 v8, 64, v8')
        a.e('v_subrev_u32 v9, 64, v9')
    def mm(S, small):
        a.e(f'v_mfma_f32_16x16x32_bf16 v[20:23], v[{S}:{S+3}], v[{S+8}:{S+11}], v[20:23]')
        if small:
            a.e(f'v_mfma_f32_16x16x32_bf16 v[16:19], v[{S}:{S+3}], v[{S+12}:{S+15}], v[16:19]')
        a.e(f'v_mfma_f32_16x16x32_bf16 v[20:23], v[{S+4}:{S+7}], v[{S+8}:{S+11}], v[20:23]')
        if small:
            a.e(f'v_mfma_f32_16x16x32_bf16 v[16:19], v[{S+4}:{S+7}], v[{S+12}:{S+15}], v[16:19]')
    reads(32, True)
    a.e('s_lshl_b32 s8, s3, 2')
    a.e('s_add_u32 s8, s8, 4')
    a.label('K2_L1')
    adv(); reads(48, True)
    a.e('s_waitcnt lgkmcnt(4)')
    mm(32, True)
    adv(); reads(32, True)
    a.e('s_waitcnt lgkmcnt(4)')
    mm(48, True)
    a.e('s_sub_u32 s8, s8, 1')
    a.e('s_cmp_lg_u32 s8, 0')
    a.e('s_cbranch_scc1 K2_L1')
    a.e('s_lshl_b32 s8, s3, 3')
    a.e('s_sub_u32 s8, 28, s8')
    a.label('K2_L2')
    adv(); reads(48, False)
    a.e('s_waitcnt lgkmcnt(3)')
    mm(32, False)
    adv(); reads(32, False)
    a.e('s_waitcnt lgkmcnt(3)')
    mm(48, False)
    a.e('s_sub_u32 s8, s8, 1')
    a.e('s_cmp_lg_u32 s8, 0')
    a.e('s_cbranch_scc1 K2_L2')
    a.e('s_waitcnt lgkmcnt(0)')
    a.e('v_lshlrev_b32 v7, 5, v2')
    a.e('v_lshl_add_u32 v7, v3, 3, v7')
    a.e('v_add_u32 v7, s10, v7')
    a.e('v_add_u32 v8, s6, v7')
    a.e('v_add_u32 v9, s7, v7')
    a.e('buffer_load_dwordx2 v[32:33], v8, s[40:43], 0 offen')
    a.e('buffer_load_dwordx2 v[34:35], v8, s[44:47], 0 offen')
    a.e('buffer_load_dwordx2 v[36:37], v9, s[40:43], 0 offen')
    a.e('buffer_load_dwordx2 v[38:39], v9, s[44:47], 0 offen')
    a.e('v_lshlrev_b32 v6, 16, v6')
    a.e('s_nop 7')
    a.e('s_waitcnt vmcnt(0)')
    for (acc, U, X, adr) in ((16, 32, 34, 8), (20, 36, 38, 9)):
        for r in range(4):
            op = 'v_lshlrev_b32 v40, 16, ' if r % 2 == 0 else 'v_and_b32 v40, 0xffff0000, '
            a.e(op + f'v{U + r//2}')
            op = 'v_lshlrev_b32 v41, 16, ' if r % 2 == 0 else 'v_and_b32 v41, 0xffff0000, '
            a.e(op + f'v{X + r//2}')
            a.e(f'''
            v_mul_f32 v40, v40, v6
            v_cvt_pk_bf16_f32 v40, v40, v40
            v_and_b32 v40, 0xffff0000, v40
            v_cvt_pk_bf16_f32 v42, v{acc+r}, v{acc+r}
            v_and_b32 v42, 0xffff0000, v42
            v_add_f32 v40, v40, v42
            v_cvt_pk_bf16_f32 v40, v40, v40
            v_and_b32 v40, 0xffff0000, v40
            v_add_f32 v{44+r}, v40, v41
            ''')
        a.e('v_cvt_pk_bf16_f32 v48, v44, v45')
        a.e('v_cvt_pk_bf16_f32 v49, v46, v47')
        a.e(f'buffer_store_dwordx2 v[48:49], v{adr}, s[48:51], 0 offen')
        a.e('s_nop 1')
    a.label('K2_END')
    a.e('s_endpgm')
    return a.text()
```

```python
from lib import *
K3_LDS = 65536 + 2 * 36864
PART = 0
STAT = 8192

def gen_k3():
    a = Asm()
    a.e('s_cmp_ge_u32 s2, 224')
    a.e('s_cbranch_scc1 K3_END')
    a.e('s_load_dwordx2 s[32:33], s[0:1], 112')
    a.e('v_lshrrev_b32 v1, 6, v0')
    a.e('s_nop 1')
    a.e('v_readfirstlane_b32 s3, v1')
    a.e('v_and_b32 v1, 63, v0')
    a.e('s_lshr_b32 s6, s2, 3')
    a.e('s_mul_i32 s4, s6, 9363')
    a.e('s_lshr_b32 s4, s4, 16')
    a.e('s_mul_i32 s5, s4, 7')
    a.e('s_sub_u32 s5, s6, s5')
    a.e('s_and_b32 s6, s2, 7')
    a.e('s_lshl_b32 s6, s6, 2')
    a.e('s_add_u32 s4, s4, s6')
    a.e('s_waitcnt lgkmcnt(0)')
    a.srd_off(36, 32, WS_HT, TSZ)
    a.srd_off(40, 32, WS_W1T, 512 * 1792 * 2)
    a.srd_off(44, 32, WS_G, 2048 * 1792 * 2)
    a.e('v_and_b32 v2, 31, v1')
    a.e('v_lshrrev_b32 v3, 5, v1')
    a.e('s_lshl_b32 s6, s5, 8')
    a.e('v_lshrrev_b32 v4, 3, v0')
    a.e('v_add_u32 v5, s6, v4')
    a.e('v_lshlrev_b32 v5, 10, v5')
    a.e('v_and_b32 v9, 7, v0')
    a.e('v_lshl_add_u32 v5, v9, 4, v5')
    a.e('s_movk_i32 s9, 144')
    a.e('v_mul_lo_u32 v4, v4, s9')
    a.e('v_lshl_add_u32 v4, v9, 4, v4')
    a.e('v_add_u32 v4, 0x10000, v4')
    a.e('v_add_u32 v15, 36864, v4')
    RB = [64, 224]
    def loadB(st):
        b = RB[st]
        for i in range(8):
            a.e(f's_add_u32 s12, s13, {32768*i}')
            a.e(f'buffer_load_dwordx4 v[{b+4*i}:{b+3+4*i}], v5, s[40:43], s12 offen')
        a.e('s_add_u32 s13, s13, 128')
    def storeB(st, buf):
        b = RB[st]
        for i in range(8):
            a.e(f'ds_write_b128 v{4 if buf == 0 else 15}, v[{b+4*i}:{b+3+4*i}] offset:{32*144*i}')
    a.e('s_mov_b32 s13, 0')
    loadB(0)
    loadB(1)
    a.e('v_and_b32 v6, 7, v0')
    a.e('v_lshrrev_b32 v7, 3, v0')
    a.e(f's_mov_b32 s8, {2*ROW}')
    a.e('v_mul_lo_u32 v8, v7, s8')
    a.e('v_lshl_add_u32 v8, v6, 4, v8')
    a.e('s_lshl_b32 s8, s4, 7')
    a.e('v_add_u32 v8, s8, v8')
    a.e('v_mov_b32 v14, v8')
    def unpack(dst, src, e):
        if e % 2 == 0:
            a.e(f'v_lshlrev_b32 v{dst}, 16, v{src + e//2}')
        else:
            a.e(f'v_and_b32 v{dst}, 0xffff0000, v{src + e//2}')
    a.e(f's_mov_b32 s15, {ROW}')
    for it in range(8):
        a.e(f'buffer_load_dwordx4 v[{128+8*it}:{131+8*it}], v8, s[36:39], 0 offen')
        a.e(f'buffer_load_dwordx4 v[{132+8*it}:{135+8*it}], v8, s[36:39], s15 offen')
        a.e(f'v_add_u32 v8, {64*ROW}, v8')
    a.e('v_lshlrev_b32 v9, 4, v0')
    a.e('s_waitcnt vmcnt(0)')
    for k in range(16):
        a.e(f'ds_write_b128 v9, v[{128+4*k}:{131+4*k}] offset:{4096*k}')
    for e in range(16):
        a.e(f'v_mov_b32 v{16+e}, 0')
    a.e('s_waitcnt lgkmcnt(0)')
    a.e('v_mov_b32 v10, v9')
    a.e('s_mov_b32 s14, 16')
    a.label('K3_P1')
    a.e('ds_read_b128 v[128:131], v10')
    a.e('v_add_u32 v10, 0x1000, v10')
    a.e('s_waitcnt lgkmcnt(0)')
    for e in range(8):
        unpack(11, 128, e)
        a.e(f'v_add_f32 v{16+e}, v{16+e}, v11')
        a.e(f'v_fma_f32 v{24+e}, v11, v11, v{24+e}')
    a.e('s_sub_u32 s14, s14, 1')
    a.e('s_cmp_lg_u32 s14, 0')
    a.e('s_cbranch_scc1 K3_P1')
    PB = 0x10000
    a.e('v_lshlrev_b32 v10, 9, v7')
    a.e('v_lshl_add_u32 v10, v6, 5, v10')
    a.e(f'v_add_u32 v10, {PB}, v10')
    a.e('ds_write_b128 v10, v[16:19]')
    a.e('ds_write_b128 v10, v[20:23] offset:16')
    a.e('ds_write_b128 v10, v[24:27] offset:256')
    a.e('ds_write_b128 v10, v[28:31] offset:272')
    a.e('s_waitcnt lgkmcnt(0)')
    a.e('s_barrier')
    a.e('v_cmp_gt_u32 vcc, 128, v0')
    a.e('s_and_saveexec_b64 s[10:11], vcc')
    a.e('v_lshlrev_b32 v10, 2, v0')
    a.e(f'v_add_u32 v10, {PB}, v10')
    for k in range(32):
        a.e(f'ds_read_b32 v{128+k}, v10 offset:{512*k}')
    a.e('s_waitcnt lgkmcnt(0)')
    for k in range(1, 32):
        a.e(f'v_add_f32 v128, v128, v{128+k}')
    a.e('ds_write_b32 v10, v128 offset:16384')
    a.e('s_mov_b64 exec, s[10:11]')
    a.e('s_waitcnt lgkmcnt(0)')
    a.e('s_barrier')
    a.e('v_lshlrev_b32 v10, 5, v6')
    a.e(f'v_add_u32 v10, {PB+16384}, v10')
    a.e('ds_read_b128 v[56:59], v10')
    a.e('ds_read_b128 v[60:63], v10 offset:16')
    a.e('ds_read_b128 v[48:51], v10 offset:256')
    a.e('ds_read_b128 v[52:55], v10 offset:272')
    a.e('s_waitcnt lgkmcnt(0)')
    a.e('s_barrier')
    a.e('s_mov_b32 s9, 0x3b000000')
    a.e('s_mov_b32 s10, 0x3727c5ac')
    for j in range(8):
        r = 48 + j
        m = 56 + j
        a.e(f'''
        v_mul_f32 v{m}, s9, v{m}
        v_mul_f32 v{r}, s9, v{r}
        v_fma_f32 v{r}, -v{m}, v{m}, v{r}
        v_max_f32 v{r}, 0, v{r}
        v_cvt_pk_bf16_f32 v{r}, v{r}, v{r}
        v_and_b32 v{r}, 0xffff0000, v{r}
        v_add_f32 v{r}, s10, v{r}
        v_cvt_pk_bf16_f32 v{r}, v{r}, v{r}
        v_and_b32 v{r}, 0xffff0000, v{r}
        v_sqrt_f32 v{r}, v{r}
        s_nop 0
        v_cvt_pk_bf16_f32 v{r}, v{r}, v{r}
        v_and_b32 v{r}, 0xffff0000, v{r}
        v_rcp_f32 v{r}, v{r}
        v_cvt_pk_bf16_f32 v{m}, v{m}, v{m}
        v_and_b32 v{m}, 0xffff0000, v{m}
        ''')
    for k in range(16):
        a.e(f'ds_read_b128 v[{128+4*k}:{131+4*k}], v9 offset:{4096*k}')
    a.e('s_waitcnt lgkmcnt(0)')
    a.e('s_barrier')
    a.e('v_lshrrev_b32 v12, 2, v7')
    a.e('v_and_b32 v13, 3, v7')
    a.e('v_lshlrev_b32 v13, 2, v13')
    a.e('v_lshl_add_u32 v13, v6, 13, v13')
    for e in range(8):
        a.e(f'v_xor_b32 v14, {e}, v6')
        a.e('v_xor_b32 v14, v14, v12')
        a.e(f'v_lshl_add_u32 v{24+e}, v14, 4, v13')
    for it in range(8):
        for e in range(8):
            unpack(11, 128 + 8 * it, e)
            unpack(12, 132 + 8 * it, e)
            a.e(f'''
            v_sub_f32 v11, v11, v{56+e}
            v_sub_f32 v12, v12, v{56+e}
            v_cvt_pk_bf16_f32 v11, v11, v12
            v_lshlrev_b32 v12, 16, v11
            v_and_b32 v11, 0xffff0000, v11
            v_mul_f32 v12, v12, v{48+e}
            v_mul_f32 v11, v11, v{48+e}
            v_cvt_pk_bf16_f32 v11, v12, v11
            ds_write_b32 v{24+e}, v11 offset:{1024*e + 128*it}
            ''')
    for rt in range(2):
        a.e(f'v_add_u32 v11, {32*rt}, v2')
        a.e('v_lshrrev_b32 v12, 3, v11')
        a.e('v_xor_b32 v12, v12, v11')
        a.e('v_and_b32 v12, 7, v12')
        for s in range(4):
            a.e(f'v_lshl_add_u32 v13, v3, 2, {s}')
            a.e('v_xor_b32 v13, v13, v12')
            a.e('v_lshlrev_b32 v13, 4, v13')
            a.e(f'v_lshl_add_u32 v{16+4*rt+s}, v11, 10, v13')
    for r in range(64):
        a.e(f'v_mov_b32 v{160+r}, 0')
    a.e('s_lshl_b32 s9, s3, 6')
    a.e('v_add_u32 v11, s9, v2')
    a.e('s_movk_i32 s9, 144')
    a.e('v_mul_lo_u32 v11, v11, s9')
    a.e('v_lshl_add_u32 v11, v3, 6, v11')
    a.e('v_add_u32 v11, 0x10000, v11')
    storeB(0, 0)
    loadB(0)
    a.e('s_mov_b32 s14, 4')
    a.label('K3_L')
    for buf in range(2):
        a.e('s_waitcnt lgkmcnt(0)')
        a.e('s_barrier')
        for rt in range(2):
            for s in range(4):
                r = 128 + 16 * rt + 4 * s
                a.e(f'ds_read_b128 v[{r}:{r+3}], v{16+4*rt+s} offset:{128*buf}')
        for ct in range(2):
            for s in range(4):
                r = 96 + 16 * ct + 4 * s
                a.e(f'ds_read_b128 v[{r}:{r+3}], v11 offset:{buf*36864 + 32*144*ct + 16*s}')
        a.e('s_waitcnt vmcnt(8)')
        storeB(1 - buf, 1 - buf)
        loadB(1 - buf)
        a.e('s_waitcnt lgkmcnt(8)')
        for s in range(4):
            for rt in range(2):
                for ct in range(2):
                    acc = 160 + 16 * (2 * rt + ct)
                    a.e(f'v_mfma_f32_32x32x16_bf16 v[{acc}:{acc+15}], v[{128+16*rt+4*s}:{131+16*rt+4*s}], v[{96+16*ct+4*s}:{96+16*ct+4*s+3}], v[{acc}:{acc+15}]')
    for k in range(8):
        a.e(f'v_add_u32 v{16+k}, 256, v{16+k}')
    a.e('s_sub_u32 s14, s14, 1')
    a.e('s_cmp_lg_u32 s14, 0')
    a.e('s_cbranch_scc1 K3_L')
    a.e('s_nop 15')
    a.e('s_waitcnt vmcnt(0) lgkmcnt(0)')
    a.e('s_barrier')
    a.e('v_lshlrev_b32 v11, 2, v3')
    a.e('s_movk_i32 s9, 1040')
    a.e('v_mul_lo_u32 v11, v11, s9')
    a.e('v_lshl_add_u32 v11, v2, 2, v11')
    a.e('s_lshl_b32 s9, s3, 8')
    a.e('v_add_u32 v11, s9, v11')
    a.e(f'v_add_u32 v12, {32*1040}, v11')
    for rt in range(2):
        for ct in range(2):
            acc = 160 + 16 * (2 * rt + ct)
            for r in range(16):
                row = 8 * (r // 4) + (r % 4)
                a.e(f'ds_write_b32 v{11+rt}, v{acc+r} offset:{row*1040 + 128*ct}')
    a.e('s_waitcnt lgkmcnt(0)')
    a.e('s_barrier')
    a.e('v_lshrrev_b32 v11, 5, v0')
    a.e('v_and_b32 v12, 31, v0')
    a.e('s_movk_i32 s9, 1040')
    a.e('v_mul_lo_u32 v13, v11, s9')
    a.e('v_lshl_add_u32 v13, v12, 5, v13')
    a.e('s_lshl_b32 s8, s4, 6')
    a.e('v_add_u32 v11, s8, v11')
    a.e('s_movk_i32 s9, 3584')
    a.e('v_mul_lo_u32 v11, v11, s9')
    a.e('v_lshl_add_u32 v11, v12, 4, v11')
    a.e('s_lshl_b32 s9, s5, 9')
    a.e('v_add_u32 v11, s9, v11')
    a.e('s_mov_b32 s14, 8')
    a.label('K3_E')
    a.e('ds_read_b128 v[64:67], v13')
    a.e('ds_read_b128 v[68:71], v13 offset:16')
    a.e(f'v_add_u32 v13, {8*1040}, v13')
    a.e('s_waitcnt lgkmcnt(0)')
    for e in range(8):
        a.e(f'v_cvt_pk_bf16_f32 v{64+e}, v{64+e}, v{64+e}')
        a.e(f'v_and_b32 v{64+e}, 0xffff0000, v{64+e}')
        a.e(f'v_mul_f32 v{72+e}, 0xbfb8aa3b, v{64+e}')
        a.e(f'v_exp_f32 v{72+e}, v{72+e}')
    for e in range(8):
        a.e(f'v_add_f32 v{72+e}, 1.0, v{72+e}')
    for e in range(8):
        a.e(f'v_rcp_f32 v{72+e}, v{72+e}')
    a.e('s_nop 0')
    for e in range(8):
        a.e(f'v_mul_f32 v{64+e}, v{64+e}, v{72+e}')
    for k in range(4):
        a.e(f'v_cvt_pk_bf16_f32 v{80+k}, v{64+2*k}, v{65+2*k}')
    a.e('buffer_store_dwordx4 v[80:83], v11, s[44:47], 0 offen')
    a.e(f'v_add_u32 v11, {8*3584}, v11')
    a.e('s_sub_u32 s14, s14, 1')
    a.e('s_cmp_lg_u32 s14, 0')
    a.e('s_cbranch_scc1 K3_E')
    a.label('K3_END')
    a.e('s_endpgm')
    return a.text()

K4_LDS = 4 * 17408
def gen_k4():
    a = Asm()
    a.e('s_cmp_ge_u32 s2, 256')
    a.e('s_cbranch_scc1 K4_END')
    a.e('s_load_dwordx2 s[8:9], s[0:1], 96')
    a.e('s_load_dwordx2 s[32:33], s[0:1], 112')
    a.e('v_lshrrev_b32 v1, 6, v0')
    a.e('s_nop 1')
    a.e('v_readfirstlane_b32 s3, v1')
    a.e('v_and_b32 v1, 63, v0')
    a.e('s_and_b32 s4, s2, 7')
    a.e('s_lshl_b32 s4, s4, 2')
    a.e('s_lshr_b32 s5, s2, 3')
    a.e('s_and_b32 s5, s5, 3')
    a.e('s_add_u32 s4, s4, s5')
    a.e('s_lshl_b32 s4, s4, 6')
    a.e('s_lshr_b32 s5, s2, 5')
    a.e('s_lshl_b32 s5, s5, 6')
    a.e('s_waitcnt lgkmcnt(0)')
    a.srd_off(36, 32, WS_HT, TSZ)
    a.srd_off(40, 32, WS_W2T, 512 * 1792 * 2)
    a.srd_off(44, 32, WS_G, 2048 * 1792 * 2)
    a.srd(48, 8, 0x200000)
    a.e('v_and_b32 v2, 31, v1')
    a.e('v_lshrrev_b32 v3, 5, v1')
    a.e('v_lshrrev_b32 v4, 4, v0')
    a.e('v_and_b32 v9, 15, v0')
    a.e('s_movk_i32 s9, 3584')
    a.e('v_add_u32 v5, s4, v4')
    a.e('v_mul_lo_u32 v5, v5, s9')
    a.e('v_lshl_add_u32 v5, v9, 4, v5')
    a.e('v_add_u32 v6, s5, v4')
    a.e('v_mul_lo_u32 v6, v6, s9')
    a.e('v_lshl_add_u32 v6, v9, 4, v6')
    a.e('s_movk_i32 s9, 272')
    a.e('v_mul_lo_u32 v4, v4, s9')
    a.e('v_lshl_add_u32 v4, v9, 4, v4')
    RS = [32, 128]
    def load(st):
        b = RS[st]
        for i in range(4):
            a.e(f's_add_u32 s12, s13, {16*3584*i}')
            a.e(f'buffer_load_dwordx4 v[{b+4*i}:{b+3+4*i}], v5, s[44:47], s12 offen')
            a.e(f'buffer_load_dwordx4 v[{b+16+4*i}:{b+19+4*i}], v6, s[40:43], s12 offen')
        a.e('s_add_u32 s13, s13, 256')
    def store(st, buf):
        b = RS[st]
        for i in range(4):
            a.e(f'ds_write_b128 v4, v[{b+4*i}:{b+3+4*i}] offset:{buf*34816 + 16*272*i}')
            a.e(f'ds_write_b128 v4, v[{b+16+4*i}:{b+19+4*i}] offset:{buf*34816 + 17408 + 16*272*i}')
    a.e('s_mov_b32 s13, 0')
    load(0)
    load(1)
    a.e('s_lshr_b32 s6, s3, 1')
    a.e('s_and_b32 s7, s3, 1')
    a.e('s_lshl_b32 s6, s6, 5')
    a.e('s_lshl_b32 s7, s7, 5')
    a.e('v_add_u32 v7, s6, v2')
    a.e('v_mul_lo_u32 v7, v7, s9')
    a.e('v_lshl_add_u32 v7, v3, 4, v7')
    a.e('v_add_u32 v8, s7, v2')
    a.e('v_mul_lo_u32 v8, v8, s9')
    a.e('v_lshl_add_u32 v8, v3, 4, v8')
    a.e('v_lshrrev_b32 v9, 2, v0')
    a.e('v_and_b32 v10, 3, v0')
    a.e('v_lshlrev_b32 v10, 4, v10')
    for r in range(16):
        a.e(f'v_mov_b32 v{160+r}, 0')
    a.e('s_waitcnt vmcnt(8)')
    store(0, 0)
    load(0)
    a.e('s_mov_b32 s14, 7')
    a.label('K4_L')
    for buf in range(2):
        a.e('s_waitcnt lgkmcnt(0)')
        a.e('s_barrier')
        for s in range(8):
            a.e(f'ds_read_b128 v[{64+4*s}:{67+4*s}], v7 offset:{buf*34816 + 32*s}')
            a.e(f'ds_read_b128 v[{96+4*s}:{99+4*s}], v8 offset:{buf*34816 + 17408 + 32*s}')
        a.e('s_waitcnt vmcnt(8)')
        store(1 - buf, 1 - buf)
        load(1 - buf)
        for s in range(8):
            a.e(f's_waitcnt lgkmcnt({min(22 - 2 * s, 15)})')
            a.e(f'v_mfma_f32_32x32x16_bf16 v[160:175], v[{64+4*s}:{67+4*s}], v[{96+4*s}:{99+4*s}], v[160:175]')
    a.e('s_sub_u32 s14, s14, 1')
    a.e('s_cmp_lg_u32 s14, 0')
    a.e('s_cbranch_scc1 K4_L')
    a.e('s_waitcnt vmcnt(0)')
    a.e('s_nop 15')
    a.e('s_waitcnt lgkmcnt(0)')
    a.e('s_barrier')
    a.e('v_lshlrev_b32 v11, 10, v3')
    a.e('v_lshl_add_u32 v11, v2, 2, v11')
    a.e('s_lshl_b32 s6, s6, 8')
    a.e('s_lshl_b32 s7, s7, 2')
    a.e('s_add_u32 s6, s6, s7')
    a.e('v_add_u32 v11, s6, v11')
    for r in range(16):
        row = 8 * (r // 4) + (r % 4)
        a.e(f'ds_write_b32 v11, v{160+r} offset:{row*256}')
    a.e('v_add_u32 v11, s5, v10')
    a.e(f's_mov_b32 s10, {ROW}')
    a.e('v_mul_lo_u32 v11, v11, s10')
    a.e('v_add_u32 v12, s4, v9')
    a.e('v_lshl_add_u32 v11, v12, 1, v11')
    for e in range(16):
        a.e(f'buffer_load_ushort v{32+e}, v11, s[36:39], 0 offen')
        a.e(f'v_add_u32 v11, {ROW}, v11')
    a.e('s_waitcnt lgkmcnt(0)')
    a.e('s_barrier')
    a.e('v_lshlrev_b32 v13, 8, v9')
    a.e('v_lshl_add_u32 v13, v10, 2, v13')
    for k in range(4):
        a.e(f'ds_read_b128 v[{64+4*k}:{67+4*k}], v13 offset:{16*k}')
    a.e('s_waitcnt vmcnt(0) lgkmcnt(0)')
    for e in range(16):
        a.e(f'''
        v_cvt_pk_bf16_f32 v{64+e}, v{64+e}, v{64+e}
        v_and_b32 v{64+e}, 0xffff0000, v{64+e}
        v_lshlrev_b32 v{32+e}, 16, v{32+e}
        v_add_f32 v{64+e}, v{64+e}, v{32+e}
        ''')
    for k in range(8):
        a.e(f'v_cvt_pk_bf16_f32 v{48+k}, v{64+2*k}, v{65+2*k}')
    a.e('v_lshlrev_b32 v14, 10, v12')
    a.e('v_add_u32 v15, s5, v10')
    a.e('v_lshl_add_u32 v14, v15, 1, v14')
    a.e('buffer_store_dwordx4 v[48:51], v14, s[48:51], 0 offen')
    a.e('buffer_store_dwordx4 v[52:55], v14, s[48:51], 0 offen offset:16')
    a.label('K4_END')
    a.e('s_endpgm')
    return a.text()
```

```python
class Asm:
    def __init__(self):
        self.lines = []
        self.lbl = 0
    def e(self, s):
        for l in s.strip('\n').split('\n'):
            self.lines.append('    ' + l.strip())
    def label(self, name):
        self.lines.append(name + ':')
    def newlabel(self, p='L'):
        self.lbl += 1
        return f'{p}_{self.lbl}'
    def raw(self, s):
        self.lines.append(s)
    def srd(self, d, base, nbytes):
        self.e(f's_mov_b32 s{d}, s{base}')
        self.e(f's_and_b32 s{d+1}, s{base+1}, 0xffff')
        self.e(f's_mov_b32 s{d+2}, {nbytes}')
        self.e(f's_mov_b32 s{d+3}, 0x00020000')
    def srd_off(self, d, base, off, nbytes):
        self.e(f's_add_u32 s{d}, s{base}, {off}')
        self.e(f's_addc_u32 s{d+1}, s{base+1}, 0')
        self.e(f's_and_b32 s{d+1}, s{d+1}, 0xffff')
        self.e(f's_mov_b32 s{d+2}, {nbytes}')
        self.e(f's_mov_b32 s{d+3}, 0x00020000')
    def text(self):
        return '\n'.join(self.lines) + '\n'

def kernel_header(name):
    return f'''.globl {name}
.p2align 8
.type {name},@function
{name}:
'''
def kernel_desc(name, vgpr, sgpr=102):
    acc = (vgpr + 3) // 4 * 4
    return f'''.amdhsa_kernel {name}
  .amdhsa_next_free_vgpr {vgpr}
  .amdhsa_next_free_sgpr {sgpr}
  .amdhsa_accum_offset {acc}
  .amdhsa_group_segment_fixed_size 0
  .amdhsa_kernarg_size 120
  .amdhsa_user_sgpr_count 2
  .amdhsa_user_sgpr_kernarg_segment_ptr 1
  .amdhsa_system_sgpr_workgroup_id_x 1
.end_amdhsa_kernel
'''
ROW = 4224
TSZ = 512 * ROW
WS_UT = 0x000000
WS_XT = 0x240000
WS_KC = 0x1400000
WS_W1T = 0x680000
WS_W2T = 0x880000
WS_HT = 0xA80000
WS_G = 0xCC0000
```

```python
from lib import *

def wave_reduce(a, regs, sdst):
    for sh in (1, 2, 4, 8):
        a.e('s_nop 1')
        for r in regs:
            a.e(f'v_add_f32_dpp v{r}, v{r}, v{r} row_shr:{sh} row_mask:0xf bank_mask:0xf bound_ctrl:0')
    a.e('s_nop 1')
    for r in regs:
        a.e(f'v_add_f32_dpp v{r}, v{r}, v{r} row_bcast:15 row_mask:0xa bank_mask:0xf')
    a.e('s_nop 1')
    for r in regs:
        a.e(f'v_add_f32_dpp v{r}, v{r}, v{r} row_bcast:31 row_mask:0xc bank_mask:0xf')
    a.e('s_nop 1')
    for i, r in enumerate(regs):
        a.e(f'v_readlane_b32 s{sdst+i}, v{r}, 63')
    a.e('s_nop 3')

def gen_k1():
    a = Asm()
    a.e('s_load_dwordx16 s[8:23], s[0:1], 0')
    a.e('s_load_dwordx8 s[24:31], s[0:1], 64')
    a.e('s_load_dwordx2 s[32:33], s[0:1], 112')
    a.e('v_lshrrev_b32 v1, 6, v0')
    a.e('s_nop 1')
    a.e('v_readfirstlane_b32 s3, v1')
    a.e('v_and_b32 v1, 63, v0')
    a.e('s_waitcnt lgkmcnt(0)')
    a.e('s_add_u32 s2, s2, 512')
    a.e('s_cmp_lt_u32 s2, 576')
    a.e('s_cbranch_scc1 K1_LN')
    a.e('s_cmp_lt_u32 s2, 688')
    a.e('s_cbranch_scc1 K1_TR')
    a.e('s_sub_u32 s2, s2, 688')
    a.e('s_mov_b32 s35, 0')
    a.e('s_cmp_lt_u32 s2, 512')
    a.e('s_cbranch_scc1 K1_KGEN')
    a.e('s_endpgm')

    a.label('K1_KGEN')
    for i in range(6):
        a.srd(36 + 4 * i, 10 + 2 * i, 131072)
    a.srd(60, 22, 1024)
    a.e('v_and_b32 v2, 127, v0')
    a.e('v_lshlrev_b32 v3, 1, v2')
    a.e('s_lshl_b32 s4, s2, 8')
    a.e('v_add_u32 v3, s4, v3')
    a.e('s_lshl_b32 s5, s2, 1')
    a.e('v_mov_b32 v4, s5')
    for i in range(6):
        a.e(f'buffer_load_ushort v{8+i}, v3, s[{36+4*i}:{39+4*i}], 0 offen')
    a.e('buffer_load_ushort v14, v4, s[60:63], 0 offen')
    a.e('s_waitcnt vmcnt(0)')
    for i in range(7):
        a.e(f'v_lshlrev_b32 v{8+i}, 16, v{8+i}')
    a.e('v_mul_f32 v14, 0x3fb8aa3b, v14')
    a.e('v_exp_f32 v14, v14')
    a.e('s_nop 1')
    a.e('v_cvt_pk_bf16_f32 v14, v14, v14')
    a.e('v_and_b32 v14, 0xffff0000, v14')
    a.e('v_mul_f32 v16, v14, v8')
    a.e('v_mul_f32 v17, v14, v9')
    a.e('v_mul_f32 v10, v14, v10')
    a.e('v_mul_f32 v11, v14, v11')
    a.e('v_mul_f32 v16, 0x3fb8aa3b, v16')
    a.e('v_mul_f32 v17, 0.15915494, v17')
    a.e('v_mul_f32 v18, v12, v10')
    a.e('v_fma_f32 v18, -v13, v11, v18')
    a.e('v_mul_f32 v19, v12, v11')
    a.e('v_fma_f32 v19, v13, v10, v19')
    a.e('v_mov_b32 v20, v16')
    a.e('v_mov_b32 v21, v17')
    a.e('v_mov_b32 v22, v19')
    a.e('v_mov_b32 v23, v18')
    a.e('v_sub_f32 v19, 0, v19')
    a.e('v_lshlrev_b32 v5, 5, v2')
    a.e('ds_write_b128 v5, v[16:19]')
    a.e('ds_write_b128 v5, v[20:23] offset:16')
    a.e('s_waitcnt lgkmcnt(0)')
    a.e('s_barrier')
    a.e('v_and_b32 v2, 15, v1')
    a.e('v_lshrrev_b32 v3, 4, v1')
    a.e('v_lshlrev_b32 v5, 4, v3')
    a.e('s_lshl_b32 s4, s35, 10')
    a.e('v_add_u32 v5, s4, v5')
    a.e('v_lshlrev_b32 v6, s3, v2')
    a.e('v_cvt_f32_u32 v7, v6')
    a.e('v_add_u32 v6, 8, v2')
    a.e('s_cmp_eq_u32 s3, 0')
    a.e('s_cselect_b32 s4, 0, 1')
    a.e('v_mov_b32 v8, s4')
    a.e('v_cmp_eq_u32 vcc, 0, v8')
    a.e('s_nop 1')
    a.e('v_cndmask_b32 v6, v6, v2, vcc')
    a.e('v_lshlrev_b32 v6, s3, v6')
    a.e('v_lshlrev_b32 v6, 4, v6')
    a.e('v_cvt_f32_u32 v6, v6')
    a.e('v_and_b32 v8, 1, v3')
    a.e('v_cvt_f32_u32 v8, v8')
    a.e('v_add_f32 v8, 1.0, v8')
    a.e('v_mul_f32 v8, 0x3e800000, v8')
    for r in range(4):
        a.e(f'v_mov_b32 v{24+r}, 0')
    a.e('ds_read_b128 v[32:35], v5')
    a.e('s_mov_b32 s8, 32')
    a.label('K1_KL')
    for t in range(2):
        p = 32 if t % 2 == 0 else 36
        pn = 36 if t % 2 == 0 else 32
        a.e('s_waitcnt lgkmcnt(0)')
        a.e(f'ds_read_b128 v[{pn}:{pn+3}], v5 offset:{64*(t+1)}')
        a.e(f'''
        v_mul_f32 v40, v{p}, v6
        v_mul_f32 v41, v{p}, v7
        v_fma_f32 v42, v{p+1}, v6, v8
        v_mul_f32 v43, v{p+1}, v7
        v_exp_f32 v40, v40
        v_exp_f32 v41, v41
        v_fract_f32 v42, v42
        v_fract_f32 v43, v43
        v_sin_f32 v42, v42
        v_cos_f32 v44, v43
        v_sin_f32 v43, v43
        s_nop 0
        v_mul_f32 v40, v40, v42
        v_mul_f32 v44, v{p+2}, v44
        v_fma_f32 v44, v{p+3}, v43, v44
        v_mul_f32 v41, v41, v44
        s_nop 1
        v_mfma_f32_16x16x4_f32 v[24:27], v40, v41, v[24:27]
        ''')
    a.e('v_add_u32 v5, 128, v5')
    a.e('s_sub_u32 s8, s8, 1')
    a.e('s_cmp_lg_u32 s8, 0')
    a.e('s_cbranch_scc1 K1_KL')
    a.e('s_waitcnt lgkmcnt(0)')
    a.e('s_nop 15')
    a.srd_off(36, 32, WS_KC, 0x800000)
    a.e('s_add_u32 s4, s3, 1')
    a.e('s_lshl_b32 s4, s4, 7')
    a.e('s_cmp_eq_u32 s3, 0')
    a.e('s_cselect_b32 s4, 0, s4')
    a.e('s_cselect_b32 s5, 16, 8')
    a.e('s_cmp_eq_u32 s3, 3')
    a.e('s_cselect_b32 s5, 9, s5')
    a.e('s_lshl_b32 s6, s2, 2')
    a.e('s_add_u32 s6, s6, s35')
    a.e('s_lshl_b32 s6, s6, 10')
    a.e('s_add_u32 s4, s4, s6')
    a.e('v_lshlrev_b32 v9, 2, v3')
    a.e('v_lshlrev_b32 v10, 4, v9')
    a.e('v_add_u32 v10, v10, v2')
    a.e('v_add_u32 v10, s4, v10')
    a.e('v_lshlrev_b32 v10, 2, v10')
    for r in range(4):
        a.e(f'v_add_u32 v11, {r}, v9')
        a.e('v_cmp_gt_u32 vcc, s5, v11')
        a.e('s_and_saveexec_b64 s[6:7], vcc')
        a.e(f'buffer_store_dword v{24+r}, v10, s[36:39], 0 offen offset:{64*r}')
        a.e('s_mov_b64 exec, s[6:7]')
    a.e('s_endpgm')

    a.label('K1_LN')
    a.srd(36, 8, 0x200000)
    a.srd_off(40, 32, WS_UT, TSZ)
    a.srd_off(44, 32, WS_XT, TSZ)
    a.e('s_sub_u32 s4, s2, 512')
    a.e('s_lshl_b32 s4, s4, 5')
    a.e('s_lshl_b32 s5, s3, 3')
    a.e('s_add_u32 s4, s4, s5')
    a.e('s_lshl_b32 s5, s4, 10')
    a.e('v_lshlrev_b32 v2, 4, v1')
    a.e('v_add_u32 v2, s5, v2')
    for j in range(8):
        a.e(f'buffer_load_dwordx4 v[{16+4*j}:{19+4*j}], v2, s[36:39], 0 offen')
        a.e('v_add_u32 v2, 0x400, v2')
    a.e('s_waitcnt vmcnt(0)')
    X = lambda j, e: 64 + 8 * j + e
    for j in range(8):
        for k in range(4):
            a.e(f'v_lshlrev_b32 v{X(j,2*k)}, 16, v{16+4*j+k}')
            a.e(f'v_and_b32 v{X(j,2*k+1)}, 0xffff0000, v{16+4*j+k}')
    for j in range(8):
        a.e(f'v_add_f32 v{8+j}, v{X(j,0)}, v{X(j,1)}')
    for e in range(2, 8):
        for j in range(8):
            a.e(f'v_add_f32 v{8+j}, v{8+j}, v{X(j,e)}')
    wave_reduce(a, list(range(8, 16)), 48)
    a.e('s_mov_b32 s6, 0x3b000000')
    for j in range(8):
        a.e(f'v_mov_b32 v{48+j}, s{48+j}')
    for j in range(8):
        a.e(f'v_mul_f32 v{48+j}, s6, v{48+j}')
    for j in range(8):
        a.e(f'v_mov_b32 v{8+j}, 0')
    for e in range(8):
        for j in range(8):
            a.e(f'v_sub_f32 v{56}, v{X(j,e)}, v{48+j}')
            a.e(f'v_fma_f32 v{8+j}, v56, v56, v{8+j}')
    wave_reduce(a, list(range(8, 16)), 56)
    a.e('s_mov_b32 s7, 0x3727c5ac')
    for j in range(8):
        a.e(f'v_mov_b32 v{8+j}, s{56+j}')
    for j in range(8):
        r = 8 + j
        a.e(f'''
        v_mul_f32 v{r}, s6, v{r}
        v_cvt_pk_bf16_f32 v{r}, v{r}, v{r}
        v_and_b32 v{r}, 0xffff0000, v{r}
        v_add_f32 v{r}, s7, v{r}
        v_cvt_pk_bf16_f32 v{r}, v{r}, v{r}
        v_and_b32 v{r}, 0xffff0000, v{r}
        v_sqrt_f32 v{r}, v{r}
        s_nop 0
        v_cvt_pk_bf16_f32 v{r}, v{r}, v{r}
        v_and_b32 v{r}, 0xffff0000, v{r}
        v_rcp_f32 v{r}, v{r}
        v_cvt_pk_bf16_f32 v{48+j}, v{48+j}, v{48+j}
        v_and_b32 v{48+j}, 0xffff0000, v{48+j}
        ''')
    U = lambda j, e: 128 + 8 * j + e
    for j in range(8):
        for e in range(8):
            a.e(f'v_sub_f32 v{U(j,e)}, v{X(j,e)}, v{48+j}')
    for j in range(8):
        for e in range(8):
            a.e(f'v_cvt_pk_bf16_f32 v{U(j,e)}, v{U(j,e)}, v{U(j,e)}')
    for j in range(8):
        for e in range(8):
            a.e(f'v_and_b32 v{U(j,e)}, 0xffff0000, v{U(j,e)}')
    for j in range(8):
        for e in range(8):
            a.e(f'v_mul_f32 v{U(j,e)}, v{U(j,e)}, v{8+j}')
    a.e(f's_mov_b32 s8, {8*ROW}')
    a.e('v_mul_lo_u32 v2, v1, s8')
    a.e('s_lshl_b32 s5, s4, 1')
    a.e('v_add_u32 v2, s5, v2')
    for e in range(8):
        o = 192 + 8 * (e % 2)
        for k in range(4):
            a.e(f'v_cvt_pk_bf16_f32 v{o+k}, v{U(2*k,e)}, v{U(2*k+1,e)}')
            a.e(f'v_cvt_pk_bf16_f32 v{o+4+k}, v{X(2*k,e)}, v{X(2*k+1,e)}')
        a.e(f'buffer_store_dwordx4 v[{o}:{o+3}], v2, s[40:43], 0 offen')
        a.e(f'buffer_store_dwordx4 v[{o+4}:{o+7}], v2, s[44:47], 0 offen')
        a.e(f'v_add_u32 v2, {ROW}, v2')
        a.e('s_nop 1')
    a.e('s_endpgm')

    a.label('K1_TR')
    a.e('s_sub_u32 s4, s2, 576')
    a.e('s_cmp_lt_u32 s4, 56')
    a.e('s_cbranch_scc0 K1_TR2')
    a.srd(36, 28, 512 * 1792 * 2)
    a.srd_off(40, 32, WS_W1T, 512 * 1792 * 2)
    a.e('s_lshl_b32 s4, s4, 2')
    a.e('s_add_u32 s4, s4, s3')
    a.e('s_mul_i32 s5, s4, 2341')
    a.e('s_lshr_b32 s5, s5, 16')
    a.e('s_mul_i32 s6, s5, 28')
    a.e('s_sub_u32 s6, s4, s6')
    a.e('s_mov_b32 s7, 3584')
    a.e('s_mov_b32 s34, 1024')
    a.e('s_branch K1_TRGO')
    a.label('K1_TR2')
    a.srd(36, 30, 512 * 1792 * 2)
    a.srd_off(40, 32, WS_W2T, 512 * 1792 * 2)
    a.e('s_sub_u32 s4, s4, 56')
    a.e('s_lshl_b32 s4, s4, 2')
    a.e('s_add_u32 s4, s4, s3')
    a.e('s_lshr_b32 s5, s4, 3')
    a.e('s_and_b32 s6, s4, 7')
    a.e('s_mov_b32 s7, 1024')
    a.e('s_mov_b32 s34, 3584')
    a.label('K1_TRGO')
    a.e('v_and_b32 v2, 7, v1')
    a.e('v_lshrrev_b32 v3, 3, v1')
    a.e('s_lshl_b32 s5, s5, 6')
    a.e('s_lshl_b32 s6, s6, 6')
    a.e('v_lshlrev_b32 v4, 3, v3')
    a.e('v_add_u32 v4, s5, v4')
    a.e('v_lshlrev_b32 v5, 3, v2')
    a.e('v_add_u32 v5, s6, v5')
    a.e('v_mul_lo_u32 v6, v4, s7')
    a.e('v_lshl_add_u32 v6, v5, 1, v6')
    a.e('v_mul_lo_u32 v7, v5, s34')
    a.e('v_lshl_add_u32 v7, v4, 1, v7')
    for j in range(8):
        a.e(f'buffer_load_dwordx4 v[{16+4*j}:{19+4*j}], v6, s[36:39], 0 offen')
        a.e('v_add_u32 v6, s7, v6')
    a.e('s_mov_b32 s8, 0x05040100')
    a.e('s_mov_b32 s9, 0x07060302')
    a.e('s_waitcnt vmcnt(0)')
    for e in range(8):
        o = 64 + 4 * (e % 2)
        sel = 's8' if e % 2 == 0 else 's9'
        for k in range(4):
            a.e(f'v_perm_b32 v{o+k}, v{16+4*(2*k+1)+e//2}, v{16+4*(2*k)+e//2}, {sel}')
        a.e(f'buffer_store_dwordx4 v[{o}:{o+3}], v7, s[40:43], 0 offen')
        a.e('v_add_u32 v7, s34, v7')
        a.e('s_nop 1')
    a.e('s_endpgm')
    return a.text()
```

```python
from lib import *
CS = 4160 + 48
KB = 64
UB = KB + 16 * CS
K2_LDS = UB + 512 + 4096

def gen_k2():
    a = Asm()
    a.e('s_cmp_ge_u32 s2, 512')
    a.e('s_cbranch_scc1 K2_END')
    a.e('s_load_dwordx2 s[8:9], s[0:1], 64')
    a.e('s_load_dwordx2 s[32:33], s[0:1], 112')
    a.e('v_lshrrev_b32 v1, 6, v0')
    a.e('s_nop 1')
    a.e('v_readfirstlane_b32 s3, v1')
    a.e('v_and_b32 v1, 63, v0')
    a.e('s_waitcnt lgkmcnt(0)')
    a.srd_off(36, 32, WS_KC, 0x800000)
    a.srd_off(40, 32, WS_UT, TSZ)
    a.srd_off(44, 32, WS_XT, TSZ)
    a.srd_off(48, 32, WS_HT, TSZ)
    a.srd(52, 8, 1024)
    a.e('s_lshl_b32 s4, s2, 14')
    a.e('s_movk_i32 s16, 0x1000')
    a.e('s_movk_i32 s17, 0x2000')
    a.e('s_movk_i32 s18, 0x3000')
    a.e(f's_mul_i32 s10, s2, {ROW}')
    a.e('v_lshlrev_b32 v2, 4, v0')
    a.e('v_add_u32 v3, s10, v2')
    a.e('buffer_load_dwordx4 v[8:11], v3, s[40:43], 0 offen')
    a.e('s_lshl_b32 s5, s2, 1')
    a.e('v_mov_b32 v4, s5')
    a.e('buffer_load_ushort v6, v4, s[52:55], 0 offen')
    for r in range(4):
        a.e(f'v_mov_b32 v{12+r}, 0')
    a.e('v_cmp_gt_u32 vcc, 32, v0')
    a.e('s_and_saveexec_b64 s[6:7], vcc')
    a.e(f'v_add_u32 v7, {UB}, v2')
    a.e('ds_write_b128 v7, v[12:15]')
    a.e('s_mov_b64 exec, s[6:7]')
    def build(tau_reg):
        a.e(f'v_lshlrev_b32 v16, 3, v{tau_reg}')
        a.e('v_sub_u32 v16, 2055, v16')
        for y in range(15):
            a.e(f'''
            v_subrev_u32 v17, {y}, v16
            v_cvt_f32_i32 v18, v17
            v_cvt_pk_bf16_f32 v18, v18, v18
            v_and_b32 v18, 0xffff, v18
            v_subrev_u32 v18, 17024, v18
            v_cmp_gt_u32 vcc, 128, v17
            s_nop 1
            v_cndmask_b32 v18, v18, v17, vcc
            v_lshlrev_b32 v18, 2, v18
            v_add_u32 v18, s4, v18
            v_cmp_gt_u32 vcc, 2048, v17
            v_mov_b32 v19, 0x7ffffff0
            s_nop 0
            v_cndmask_b32 v18, v19, v18, vcc
            buffer_load_dword v{32+y}, v18, s[36:39], 0 offen
            ''')
        a.e('v_mov_b32 v47, 0')
        a.e('s_waitcnt vmcnt(0)')
        for k in range(8):
            a.e(f'v_cvt_pk_bf16_f32 v{48+k}, v{32+2*k}, v{33+2*k}')
        for k in range(8):
            a.e(f'v_lshlrev_b32 v20, 16, v{48+k}')
            a.e(f'v_and_b32 v21, 0xffff0000, v{48+k}')
            a.e(f'v_sub_f32 v20, v{32+2*k}, v20')
            a.e(f'v_sub_f32 v21, v{33+2*k}, v21')
            a.e(f'v_cvt_pk_bf16_f32 v{56+k}, v20, v21')
        a.e(f'v_lshlrev_b32 v22, 4, v{tau_reg}')
        for part in range(2):
            P = 48 + 8 * part
            for s in range(8):
                y0 = 7 - s
                off = KB + (8 * part + s) * CS
                if y0 % 2 == 0:
                    k = y0 // 2
                    a.e(f'ds_write_b128 v22, v[{P+k}:{P+k+3}] offset:{off}') if (P + k) % 2 == 0 else None
                    if (P + k) % 2 != 0:
                        for i in range(4):
                            a.e(f'v_mov_b32 v{24+i}, v{P+k+i}')
                        a.e(f'ds_write_b128 v22, v[24:27] offset:{off}')
                else:
                    k = y0 // 2
                    for i in range(4):
                        a.e(f'v_alignbit_b32 v{28+i}, v{P+k+i+1}, v{P+k+i}, 16')
                    a.e(f'ds_write_b128 v22, v[28:31] offset:{off}')
    a.e('v_mov_b32 v5, v0')
    a.e('s_mov_b32 s11, 0')
    a.label('K2_BL')
    build(5)
    a.e('s_waitcnt lgkmcnt(0)')
    a.e('v_add_u32 v5, 256, v0')
    a.e('v_cmp_gt_u32 vcc, 4, v0')
    a.e('s_and_b64 exec, exec, vcc')
    a.e('s_add_u32 s11, s11, 1')
    a.e('s_cmp_lt_u32 s11, 2')
    a.e('s_cbranch_scc1 K2_BL')
    a.e('s_mov_b64 exec, -1')
    a.e(f'v_add_u32 v7, {UB}, v2')
    a.e('ds_write_b128 v7, v[8:11] offset:512')
    a.e('s_waitcnt lgkmcnt(0)')
    a.e('s_barrier')
    a.e('v_and_b32 v2, 15, v1')
    a.e('v_lshrrev_b32 v3, 4, v1')
    a.e('v_and_b32 v4, 7, v1')
    a.e('v_mul_u32_u24 v5, v4, ' + str(CS)) if False else None
    a.e(f's_mov_b32 s6, {CS}')
    a.e('v_mul_lo_u32 v5, v4, s6')
    a.e('v_lshrrev_b32 v7, 3, v2')
    a.e('v_sub_u32 v7, v3, v7')
    a.e('v_lshlrev_b32 v7, 4, v7')
    a.e('v_add_u32 v5, v5, v7')
    a.e(f'v_add_u32 v5, {KB + 4096 - 32}, v5')
    a.e('v_lshlrev_b32 v7, 5, v2')
    a.e('v_lshl_add_u32 v7, v3, 4, v7')
    a.e(f'v_add_u32 v7, {UB+512-32}, v7')
    a.e('s_lshl_b32 s6, s3, 9')
    a.e('v_add_u32 v8, s6, v7')
    a.e('s_sub_u32 s7, 7, s3')
    a.e('s_lshl_b32 s7, s7, 9')
    a.e('v_add_u32 v9, s7, v7')
    for r in range(8):
        a.e(f'v_mov_b32 v{16+r}, 0')
    LO = 8 * CS
    def reads(S, small):
        a.e(f'ds_read_b128 v[{S}:{S+3}], v5')
        a.e(f'ds_read_b128 v[{S+4}:{S+7}], v5 offset:{LO}')
        a.e(f'ds_read_b128 v[{S+8}:{S+11}], v9')
        if small:
            a.e(f'ds_read_b128 v[{S+12}:{S+15}], v8')
    def adv():
        a.e('v_subrev_u32 v5, 64, v5')
        a.e('v_subrev_u32 v8, 64, v8')
        a.e('v_subrev_u32 v9, 64, v9')
    def mm(S, small):
        a.e(f'v_mfma_f32_16x16x32_bf16 v[20:23], v[{S}:{S+3}], v[{S+8}:{S+11}], v[20:23]')
        if small:
            a.e(f'v_mfma_f32_16x16x32_bf16 v[16:19], v[{S}:{S+3}], v[{S+12}:{S+15}], v[16:19]')
        a.e(f'v_mfma_f32_16x16x32_bf16 v[20:23], v[{S+4}:{S+7}], v[{S+8}:{S+11}], v[20:23]')
        if small:
            a.e(f'v_mfma_f32_16x16x32_bf16 v[16:19], v[{S+4}:{S+7}], v[{S+12}:{S+15}], v[16:19]')
    reads(32, True)
    a.e('s_lshl_b32 s8, s3, 2')
    a.e('s_add_u32 s8, s8, 4')
    a.label('K2_L1')
    adv(); reads(48, True)
    a.e('s_waitcnt lgkmcnt(4)')
    mm(32, True)
    adv(); reads(32, True)
    a.e('s_waitcnt lgkmcnt(4)')
    mm(48, True)
    a.e('s_sub_u32 s8, s8, 1')
    a.e('s_cmp_lg_u32 s8, 0')
    a.e('s_cbranch_scc1 K2_L1')
    a.e('s_lshl_b32 s8, s3, 3')
    a.e('s_sub_u32 s8, 28, s8')
    a.label('K2_L2')
    adv(); reads(48, False)
    a.e('s_waitcnt lgkmcnt(3)')
    mm(32, False)
    adv(); reads(32, False)
    a.e('s_waitcnt lgkmcnt(3)')
    mm(48, False)
    a.e('s_sub_u32 s8, s8, 1')
    a.e('s_cmp_lg_u32 s8, 0')
    a.e('s_cbranch_scc1 K2_L2')
    a.e('s_waitcnt lgkmcnt(0)')
    a.e('v_lshlrev_b32 v7, 5, v2')
    a.e('v_lshl_add_u32 v7, v3, 3, v7')
    a.e('v_add_u32 v7, s10, v7')
    a.e('v_add_u32 v8, s6, v7')
    a.e('v_add_u32 v9, s7, v7')
    a.e('buffer_load_dwordx2 v[32:33], v8, s[40:43], 0 offen')
    a.e('buffer_load_dwordx2 v[34:35], v8, s[44:47], 0 offen')
    a.e('buffer_load_dwordx2 v[36:37], v9, s[40:43], 0 offen')
    a.e('buffer_load_dwordx2 v[38:39], v9, s[44:47], 0 offen')
    a.e('v_lshlrev_b32 v6, 16, v6')
    a.e('s_nop 7')
    a.e('s_waitcnt vmcnt(0)')
    for (acc, U, X, adr) in ((16, 32, 34, 8), (20, 36, 38, 9)):
        for r in range(4):
            op = 'v_lshlrev_b32 v40, 16, ' if r % 2 == 0 else 'v_and_b32 v40, 0xffff0000, '
            a.e(op + f'v{U + r//2}')
            op = 'v_lshlrev_b32 v41, 16, ' if r % 2 == 0 else 'v_and_b32 v41, 0xffff0000, '
            a.e(op + f'v{X + r//2}')
            a.e(f'''
            v_mul_f32 v40, v40, v6
            v_cvt_pk_bf16_f32 v40, v40, v40
            v_and_b32 v40, 0xffff0000, v40
            v_cvt_pk_bf16_f32 v42, v{acc+r}, v{acc+r}
            v_and_b32 v42, 0xffff0000, v42
            v_add_f32 v40, v40, v42
            v_cvt_pk_bf16_f32 v40, v40, v40
            v_and_b32 v40, 0xffff0000, v40
            v_add_f32 v{44+r}, v40, v41
            ''')
        a.e('v_cvt_pk_bf16_f32 v48, v44, v45')
        a.e('v_cvt_pk_bf16_f32 v49, v46, v47')
        a.e(f'buffer_store_dwordx2 v[48:49], v{adr}, s[48:51], 0 offen')
        a.e('s_nop 1')
    a.label('K2_END')
    a.e('s_endpgm')
    return a.text()
```

```python
from lib import *
K3_LDS = 65536 + 2 * 36864
PART = 0
STAT = 8192

def gen_k3():
    a = Asm()
    a.e('s_cmp_ge_u32 s2, 224')
    a.e('s_cbranch_scc1 K3_END')
    a.e('s_load_dwordx2 s[32:33], s[0:1], 112')
    a.e('v_lshrrev_b32 v1, 6, v0')
    a.e('s_nop 1')
    a.e('v_readfirstlane_b32 s3, v1')
    a.e('v_and_b32 v1, 63, v0')
    a.e('s_lshr_b32 s6, s2, 3')
    a.e('s_mul_i32 s4, s6, 9363')
    a.e('s_lshr_b32 s4, s4, 16')
    a.e('s_mul_i32 s5, s4, 7')
    a.e('s_sub_u32 s5, s6, s5')
    a.e('s_and_b32 s6, s2, 7')
    a.e('s_lshl_b32 s6, s6, 2')
    a.e('s_add_u32 s4, s4, s6')
    a.e('s_waitcnt lgkmcnt(0)')
    a.srd_off(36, 32, WS_HT, TSZ)
    a.srd_off(40, 32, WS_W1T, 512 * 1792 * 2)
    a.srd_off(44, 32, WS_G, 2048 * 1792 * 2)
    a.e('v_and_b32 v2, 31, v1')
    a.e('v_lshrrev_b32 v3, 5, v1')
    a.e('s_lshl_b32 s6, s5, 8')
    a.e('v_lshrrev_b32 v4, 3, v0')
    a.e('v_add_u32 v5, s6, v4')
    a.e('v_lshlrev_b32 v5, 10, v5')
    a.e('v_and_b32 v9, 7, v0')
    a.e('v_lshl_add_u32 v5, v9, 4, v5')
    a.e('s_movk_i32 s9, 144')
    a.e('v_mul_lo_u32 v4, v4, s9')
    a.e('v_lshl_add_u32 v4, v9, 4, v4')
    a.e('v_add_u32 v4, 0x10000, v4')
    a.e('v_add_u32 v15, 36864, v4')
    RB = [64, 224]
    def loadB(st):
        b = RB[st]
        for i in range(8):
            a.e(f's_add_u32 s12, s13, {32768*i}')
            a.e(f'buffer_load_dwordx4 v[{b+4*i}:{b+3+4*i}], v5, s[40:43], s12 offen')
        a.e('s_add_u32 s13, s13, 128')
    def storeB(st, buf):
        b = RB[st]
        for i in range(8):
            a.e(f'ds_write_b128 v{4 if buf == 0 else 15}, v[{b+4*i}:{b+3+4*i}] offset:{32*144*i}')
    a.e('s_mov_b32 s13, 0')
    loadB(0)
    loadB(1)
    a.e('v_and_b32 v6, 7, v0')
    a.e('v_lshrrev_b32 v7, 3, v0')
    a.e(f's_mov_b32 s8, {2*ROW}')
    a.e('v_mul_lo_u32 v8, v7, s8')
    a.e('v_lshl_add_u32 v8, v6, 4, v8')
    a.e('s_lshl_b32 s8, s4, 7')
    a.e('v_add_u32 v8, s8, v8')
    a.e('v_mov_b32 v14, v8')
    def unpack(dst, src, e):
        if e % 2 == 0:
            a.e(f'v_lshlrev_b32 v{dst}, 16, v{src + e//2}')
        else:
            a.e(f'v_and_b32 v{dst}, 0xffff0000, v{src + e//2}')
    a.e(f's_mov_b32 s15, {ROW}')
    for it in range(8):
        a.e(f'buffer_load_dwordx4 v[{128+8*it}:{131+8*it}], v8, s[36:39], 0 offen')
        a.e(f'buffer_load_dwordx4 v[{132+8*it}:{135+8*it}], v8, s[36:39], s15 offen')
        a.e(f'v_add_u32 v8, {64*ROW}, v8')
    a.e('v_lshlrev_b32 v9, 4, v0')
    a.e('s_waitcnt vmcnt(0)')
    for k in range(16):
        a.e(f'ds_write_b128 v9, v[{128+4*k}:{131+4*k}] offset:{4096*k}')
    for e in range(16):
        a.e(f'v_mov_b32 v{16+e}, 0')
    a.e('s_waitcnt lgkmcnt(0)')
    a.e('v_mov_b32 v10, v9')
    a.e('s_mov_b32 s14, 16')
    a.label('K3_P1')
    a.e('ds_read_b128 v[128:131], v10')
    a.e('v_add_u32 v10, 0x1000, v10')
    a.e('s_waitcnt lgkmcnt(0)')
    for e in range(8):
        unpack(11, 128, e)
        a.e(f'v_add_f32 v{16+e}, v{16+e}, v11')
        a.e(f'v_fma_f32 v{24+e}, v11, v11, v{24+e}')
    a.e('s_sub_u32 s14, s14, 1')
    a.e('s_cmp_lg_u32 s14, 0')
    a.e('s_cbranch_scc1 K3_P1')
    PB = 0x10000
    a.e('v_lshlrev_b32 v10, 9, v7')
    a.e('v_lshl_add_u32 v10, v6, 5, v10')
    a.e(f'v_add_u32 v10, {PB}, v10')
    a.e('ds_write_b128 v10, v[16:19]')
    a.e('ds_write_b128 v10, v[20:23] offset:16')
    a.e('ds_write_b128 v10, v[24:27] offset:256')
    a.e('ds_write_b128 v10, v[28:31] offset:272')
    a.e('s_waitcnt lgkmcnt(0)')
    a.e('s_barrier')
    a.e('v_cmp_gt_u32 vcc, 128, v0')
    a.e('s_and_saveexec_b64 s[10:11], vcc')
    a.e('v_lshlrev_b32 v10, 2, v0')
    a.e(f'v_add_u32 v10, {PB}, v10')
    for k in range(32):
        a.e(f'ds_read_b32 v{128+k}, v10 offset:{512*k}')
    a.e('s_waitcnt lgkmcnt(0)')
    for k in range(1, 32):
        a.e(f'v_add_f32 v128, v128, v{128+k}')
    a.e('ds_write_b32 v10, v128 offset:16384')
    a.e('s_mov_b64 exec, s[10:11]')
    a.e('s_waitcnt lgkmcnt(0)')
    a.e('s_barrier')
    a.e('v_lshlrev_b32 v10, 5, v6')
    a.e(f'v_add_u32 v10, {PB+16384}, v10')
    a.e('ds_read_b128 v[56:59], v10')
    a.e('ds_read_b128 v[60:63], v10 offset:16')
    a.e('ds_read_b128 v[48:51], v10 offset:256')
    a.e('ds_read_b128 v[52:55], v10 offset:272')
    a.e('s_waitcnt lgkmcnt(0)')
    a.e('s_barrier')
    a.e('s_mov_b32 s9, 0x3b000000')
    a.e('s_mov_b32 s10, 0x3727c5ac')
    for j in range(8):
        r = 48 + j
        m = 56 + j
        a.e(f'''
        v_mul_f32 v{m}, s9, v{m}
        v_mul_f32 v{r}, s9, v{r}
        v_fma_f32 v{r}, -v{m}, v{m}, v{r}
        v_max_f32 v{r}, 0, v{r}
        v_cvt_pk_bf16_f32 v{r}, v{r}, v{r}
        v_and_b32 v{r}, 0xffff0000, v{r}
        v_add_f32 v{r}, s10, v{r}
        v_cvt_pk_bf16_f32 v{r}, v{r}, v{r}
        v_and_b32 v{r}, 0xffff0000, v{r}
        v_sqrt_f32 v{r}, v{r}
        s_nop 0
        v_cvt_pk_bf16_f32 v{r}, v{r}, v{r}
        v_and_b32 v{r}, 0xffff0000, v{r}
        v_rcp_f32 v{r}, v{r}
        v_cvt_pk_bf16_f32 v{m}, v{m}, v{m}
        v_and_b32 v{m}, 0xffff0000, v{m}
        ''')
    for k in range(16):
        a.e(f'ds_read_b128 v[{128+4*k}:{131+4*k}], v9 offset:{4096*k}')
    a.e('s_waitcnt lgkmcnt(0)')
    a.e('s_barrier')
    a.e('v_lshrrev_b32 v12, 2, v7')
    a.e('v_and_b32 v13, 3, v7')
    a.e('v_lshlrev_b32 v13, 2, v13')
    a.e('v_lshl_add_u32 v13, v6, 13, v13')
    for e in range(8):
        a.e(f'v_xor_b32 v14, {e}, v6')
        a.e('v_xor_b32 v14, v14, v12')
        a.e(f'v_lshl_add_u32 v{24+e}, v14, 4, v13')
    for it in range(8):
        for e in range(8):
            unpack(11, 128 + 8 * it, e)
            unpack(12, 132 + 8 * it, e)
            a.e(f'''
            v_sub_f32 v11, v11, v{56+e}
            v_sub_f32 v12, v12, v{56+e}
            v_cvt_pk_bf16_f32 v11, v11, v12
            v_lshlrev_b32 v12, 16, v11
            v_and_b32 v11, 0xffff0000, v11
            v_mul_f32 v12, v12, v{48+e}
            v_mul_f32 v11, v11, v{48+e}
            v_cvt_pk_bf16_f32 v11, v12, v11
            ds_write_b32 v{24+e}, v11 offset:{1024*e + 128*it}
            ''')
    for rt in range(2):
        a.e(f'v_add_u32 v11, {32*rt}, v2')
        a.e('v_lshrrev_b32 v12, 3, v11')
        a.e('v_xor_b32 v12, v12, v11')
        a.e('v_and_b32 v12, 7, v12')
        for s in range(4):
            a.e(f'v_lshl_add_u32 v13, v3, 2, {s}')
            a.e('v_xor_b32 v13, v13, v12')
            a.e('v_lshlrev_b32 v13, 4, v13')
            a.e(f'v_lshl_add_u32 v{16+4*rt+s}, v11, 10, v13')
    for r in range(64):
        a.e(f'v_mov_b32 v{160+r}, 0')
    a.e('s_lshl_b32 s9, s3, 6')
    a.e('v_add_u32 v11, s9, v2')
    a.e('s_movk_i32 s9, 144')
    a.e('v_mul_lo_u32 v11, v11, s9')
    a.e('v_lshl_add_u32 v11, v3, 6, v11')
    a.e('v_add_u32 v11, 0x10000, v11')
    storeB(0, 0)
    loadB(0)
    a.e('s_mov_b32 s14, 4')
    a.label('K3_L')
    for buf in range(2):
        a.e('s_waitcnt lgkmcnt(0)')
        a.e('s_barrier')
        for rt in range(2):
            for s in range(4):
                r = 128 + 16 * rt + 4 * s
                a.e(f'ds_read_b128 v[{r}:{r+3}], v{16+4*rt+s} offset:{128*buf}')
        for ct in range(2):
            for s in range(4):
                r = 96 + 16 * ct + 4 * s
                a.e(f'ds_read_b128 v[{r}:{r+3}], v11 offset:{buf*36864 + 32*144*ct + 16*s}')
        a.e('s_waitcnt vmcnt(8) lgkmcnt(0)')
        b = RB[1 - buf]
        n = 0
        for s in range(4):
            for rt in range(2):
                for ct in range(2):
                    acc = 160 + 16 * (2 * rt + ct)
                    a.e(f'v_mfma_f32_32x32x16_bf16 v[{acc}:{acc+15}], v[{128+16*rt+4*s}:{131+16*rt+4*s}], v[{96+16*ct+4*s}:{96+16*ct+4*s+3}], v[{acc}:{acc+15}]')
                    if n < 8:
                        a.e(f'ds_write_b128 v{4 if buf == 1 else 15}, v[{b+4*n}:{b+3+4*n}] offset:{32*144*n}')
                    n += 1
                    if n == 10:
                        loadB(1 - buf)
    for k in range(8):
        a.e(f'v_add_u32 v{16+k}, 256, v{16+k}')
    a.e('s_sub_u32 s14, s14, 1')
    a.e('s_cmp_lg_u32 s14, 0')
    a.e('s_cbranch_scc1 K3_L')
    a.e('s_nop 15')
    a.e('s_waitcnt vmcnt(0) lgkmcnt(0)')
    a.e('s_barrier')
    a.e('v_lshlrev_b32 v11, 2, v3')
    a.e('s_movk_i32 s9, 1040')
    a.e('v_mul_lo_u32 v11, v11, s9')
    a.e('v_lshl_add_u32 v11, v2, 2, v11')
    a.e('s_lshl_b32 s9, s3, 8')
    a.e('v_add_u32 v11, s9, v11')
    a.e(f'v_add_u32 v12, {32*1040}, v11')
    for rt in range(2):
        for ct in range(2):
            acc = 160 + 16 * (2 * rt + ct)
            for r in range(16):
                row = 8 * (r // 4) + (r % 4)
                a.e(f'ds_write_b32 v{11+rt}, v{acc+r} offset:{row*1040 + 128*ct}')
    a.e('s_waitcnt lgkmcnt(0)')
    a.e('s_barrier')
    a.e('v_lshrrev_b32 v11, 5, v0')
    a.e('v_and_b32 v12, 31, v0')
    a.e('s_movk_i32 s9, 1040')
    a.e('v_mul_lo_u32 v13, v11, s9')
    a.e('v_lshl_add_u32 v13, v12, 5, v13')
    a.e('s_lshl_b32 s8, s4, 6')
    a.e('v_add_u32 v11, s8, v11')
    a.e('s_movk_i32 s9, 3584')
    a.e('v_mul_lo_u32 v11, v11, s9')
    a.e('v_lshl_add_u32 v11, v12, 4, v11')
    a.e('s_lshl_b32 s9, s5, 9')
    a.e('v_add_u32 v11, s9, v11')
    a.e('s_mov_b32 s14, 8')
    a.label('K3_E')
    a.e('ds_read_b128 v[64:67], v13')
    a.e('ds_read_b128 v[68:71], v13 offset:16')
    a.e(f'v_add_u32 v13, {8*1040}, v13')
    a.e('s_waitcnt lgkmcnt(0)')
    for e in range(8):
        a.e(f'v_cvt_pk_bf16_f32 v{64+e}, v{64+e}, v{64+e}')
        a.e(f'v_and_b32 v{64+e}, 0xffff0000, v{64+e}')
        a.e(f'v_mul_f32 v{72+e}, 0xbfb8aa3b, v{64+e}')
        a.e(f'v_exp_f32 v{72+e}, v{72+e}')
    for e in range(8):
        a.e(f'v_add_f32 v{72+e}, 1.0, v{72+e}')
    for e in range(8):
        a.e(f'v_rcp_f32 v{72+e}, v{72+e}')
    a.e('s_nop 0')
    for e in range(8):
        a.e(f'v_mul_f32 v{64+e}, v{64+e}, v{72+e}')
    for k in range(4):
        a.e(f'v_cvt_pk_bf16_f32 v{80+k}, v{64+2*k}, v{65+2*k}')
    a.e('buffer_store_dwordx4 v[80:83], v11, s[44:47], 0 offen')
    a.e(f'v_add_u32 v11, {8*3584}, v11')
    a.e('s_sub_u32 s14, s14, 1')
    a.e('s_cmp_lg_u32 s14, 0')
    a.e('s_cbranch_scc1 K3_E')
    a.label('K3_END')
    a.e('s_endpgm')
    return a.text()

K4_LDS = 4 * 17408
def gen_k4():
    a = Asm()
    a.e('s_cmp_ge_u32 s2, 256')
    a.e('s_cbranch_scc1 K4_END')
    a.e('s_load_dwordx2 s[8:9], s[0:1], 96')
    a.e('s_load_dwordx2 s[32:33], s[0:1], 112')
    a.e('v_lshrrev_b32 v1, 6, v0')
    a.e('s_nop 1')
    a.e('v_readfirstlane_b32 s3, v1')
    a.e('v_and_b32 v1, 63, v0')
    a.e('s_and_b32 s4, s2, 7')
    a.e('s_lshl_b32 s4, s4, 2')
    a.e('s_lshr_b32 s5, s2, 3')
    a.e('s_and_b32 s5, s5, 3')
    a.e('s_add_u32 s4, s4, s5')
    a.e('s_lshl_b32 s4, s4, 6')
    a.e('s_lshr_b32 s5, s2, 5')
    a.e('s_lshl_b32 s5, s5, 6')
    a.e('s_waitcnt lgkmcnt(0)')
    a.srd_off(36, 32, WS_HT, TSZ)
    a.srd_off(40, 32, WS_W2T, 512 * 1792 * 2)
    a.srd_off(44, 32, WS_G, 2048 * 1792 * 2)
    a.srd(48, 8, 0x200000)
    a.e('v_and_b32 v2, 31, v1')
    a.e('v_lshrrev_b32 v3, 5, v1')
    a.e('v_lshrrev_b32 v4, 4, v0')
    a.e('v_and_b32 v9, 15, v0')
    a.e('s_movk_i32 s9, 3584')
    a.e('v_add_u32 v5, s4, v4')
    a.e('v_mul_lo_u32 v5, v5, s9')
    a.e('v_lshl_add_u32 v5, v9, 4, v5')
    a.e('v_add_u32 v6, s5, v4')
    a.e('v_mul_lo_u32 v6, v6, s9')
    a.e('v_lshl_add_u32 v6, v9, 4, v6')
    a.e('s_movk_i32 s9, 272')
    a.e('v_mul_lo_u32 v4, v4, s9')
    a.e('v_lshl_add_u32 v4, v9, 4, v4')
    RS = [32, 128]
    def load(st):
        b = RS[st]
        for i in range(4):
            a.e(f's_add_u32 s12, s13, {16*3584*i}')
            a.e(f'buffer_load_dwordx4 v[{b+4*i}:{b+3+4*i}], v5, s[44:47], s12 offen')
            a.e(f'buffer_load_dwordx4 v[{b+16+4*i}:{b+19+4*i}], v6, s[40:43], s12 offen')
        a.e('s_add_u32 s13, s13, 256')
    def store(st, buf):
        b = RS[st]
        for i in range(4):
            a.e(f'ds_write_b128 v4, v[{b+4*i}:{b+3+4*i}] offset:{buf*34816 + 16*272*i}')
            a.e(f'ds_write_b128 v4, v[{b+16+4*i}:{b+19+4*i}] offset:{buf*34816 + 17408 + 16*272*i}')
    a.e('s_mov_b32 s13, 0')
    load(0)
    load(1)
    a.e('s_lshr_b32 s6, s3, 1')
    a.e('s_and_b32 s7, s3, 1')
    a.e('s_lshl_b32 s6, s6, 5')
    a.e('s_lshl_b32 s7, s7, 5')
    a.e('v_add_u32 v7, s6, v2')
    a.e('v_mul_lo_u32 v7, v7, s9')
    a.e('v_lshl_add_u32 v7, v3, 4, v7')
    a.e('v_add_u32 v8, s7, v2')
    a.e('v_mul_lo_u32 v8, v8, s9')
    a.e('v_lshl_add_u32 v8, v3, 4, v8')
    a.e('v_lshrrev_b32 v9, 2, v0')
    a.e('v_and_b32 v10, 3, v0')
    a.e('v_lshlrev_b32 v10, 4, v10')
    for r in range(16):
        a.e(f'v_mov_b32 v{160+r}, 0')
    a.e('s_waitcnt vmcnt(8)')
    store(0, 0)
    load(0)
    a.e('s_mov_b32 s14, 7')
    a.label('K4_L')
    for buf in range(2):
        a.e('s_waitcnt lgkmcnt(0)')
        a.e('s_barrier')
        for s in range(8):
            a.e(f'ds_read_b128 v[{64+4*s}:{67+4*s}], v7 offset:{buf*34816 + 32*s}')
            a.e(f'ds_read_b128 v[{96+4*s}:{99+4*s}], v8 offset:{buf*34816 + 17408 + 32*s}')
        a.e('s_waitcnt vmcnt(8)')
        b = RS[1 - buf]; nb = 1 - buf
        for s in range(8):
            a.e(f's_waitcnt lgkmcnt({14 - 2 * s + (s if s else 0)})' if False else f's_waitcnt lgkmcnt({min(15, 14 - 2 * s + s)})')
            a.e(f'v_mfma_f32_32x32x16_bf16 v[160:175], v[{64+4*s}:{67+4*s}], v[{96+4*s}:{99+4*s}], v[160:175]')
            i = s // 2
            if s % 2 == 0:
                a.e(f'ds_write_b128 v4, v[{b+4*i}:{b+3+4*i}] offset:{nb*34816 + 16*272*i}')
            else:
                a.e(f'ds_write_b128 v4, v[{b+16+4*i}:{b+19+4*i}] offset:{nb*34816 + 17408 + 16*272*i}')
        a.e('s_nop 1')
        load(1 - buf)
    a.e('s_sub_u32 s14, s14, 1')
    a.e('s_cmp_lg_u32 s14, 0')
    a.e('s_cbranch_scc1 K4_L')
    a.e('s_waitcnt vmcnt(0)')
    a.e('s_nop 15')
    a.e('s_waitcnt lgkmcnt(0)')
    a.e('s_barrier')
    a.e('v_lshlrev_b32 v11, 10, v3')
    a.e('v_lshl_add_u32 v11, v2, 2, v11')
    a.e('s_lshl_b32 s6, s6, 8')
    a.e('s_lshl_b32 s7, s7, 2')
    a.e('s_add_u32 s6, s6, s7')
    a.e('v_add_u32 v11, s6, v11')
    for r in range(16):
        row = 8 * (r // 4) + (r % 4)
        a.e(f'ds_write_b32 v11, v{160+r} offset:{row*256}')
    a.e('v_add_u32 v11, s5, v10')
    a.e(f's_mov_b32 s10, {ROW}')
    a.e('v_mul_lo_u32 v11, v11, s10')
    a.e('v_add_u32 v12, s4, v9')
    a.e('v_lshl_add_u32 v11, v12, 1, v11')
    for e in range(16):
        a.e(f'buffer_load_ushort v{32+e}, v11, s[36:39], 0 offen')
        a.e(f'v_add_u32 v11, {ROW}, v11')
    a.e('s_waitcnt lgkmcnt(0)')
    a.e('s_barrier')
    a.e('v_lshlrev_b32 v13, 8, v9')
    a.e('v_lshl_add_u32 v13, v10, 2, v13')
    for k in range(4):
        a.e(f'ds_read_b128 v[{64+4*k}:{67+4*k}], v13 offset:{16*k}')
    a.e('s_waitcnt vmcnt(0) lgkmcnt(0)')
    for e in range(16):
        a.e(f'''
        v_cvt_pk_bf16_f32 v{64+e}, v{64+e}, v{64+e}
        v_and_b32 v{64+e}, 0xffff0000, v{64+e}
        v_lshlrev_b32 v{32+e}, 16, v{32+e}
        v_add_f32 v{64+e}, v{64+e}, v{32+e}
        ''')
    for k in range(8):
        a.e(f'v_cvt_pk_bf16_f32 v{48+k}, v{64+2*k}, v{65+2*k}')
    a.e('v_lshlrev_b32 v14, 10, v12')
    a.e('v_add_u32 v15, s5, v10')
    a.e('v_lshl_add_u32 v14, v15, 1, v14')
    a.e('buffer_store_dwordx4 v[48:51], v14, s[48:51], 0 offen')
    a.e('buffer_store_dwordx4 v[52:55], v14, s[48:51], 0 offen offset:16')
    a.label('K4_END')
    a.e('s_endpgm')
    return a.text()
```

```python
from lib import *

def wave_reduce(a, regs, sdst):
    for sh in (1, 2, 4, 8):
        a.e('s_nop 1')
        for r in regs:
            a.e(f'v_add_f32_dpp v{r}, v{r}, v{r} row_shr:{sh} row_mask:0xf bank_mask:0xf bound_ctrl:0')
    a.e('s_nop 1')
    for r in regs:
        a.e(f'v_add_f32_dpp v{r}, v{r}, v{r} row_bcast:15 row_mask:0xa bank_mask:0xf')
    a.e('s_nop 1')
    for r in regs:
        a.e(f'v_add_f32_dpp v{r}, v{r}, v{r} row_bcast:31 row_mask:0xc bank_mask:0xf')
    a.e('s_nop 1')
    for i, r in enumerate(regs):
        a.e(f'v_readlane_b32 s{sdst+i}, v{r}, 63')
    a.e('s_nop 3')

def gen_k1():
    a = Asm()
    a.e('s_load_dwordx16 s[8:23], s[0:1], 0')
    a.e('s_load_dwordx8 s[24:31], s[0:1], 64')
    a.e('s_load_dwordx2 s[32:33], s[0:1], 112')
    a.e('v_lshrrev_b32 v1, 6, v0')
    a.e('s_nop 1')
    a.e('v_readfirstlane_b32 s3, v1')
    a.e('v_and_b32 v1, 63, v0')
    a.e('s_waitcnt lgkmcnt(0)')
    a.e('s_add_u32 s2, s2, 512')
    a.e('s_cmp_lt_u32 s2, 576')
    a.e('s_cbranch_scc1 K1_LN')
    a.e('s_cmp_lt_u32 s2, 688')
    a.e('s_cbranch_scc1 K1_TR')
    a.e('s_sub_u32 s2, s2, 688')
    a.e('s_mov_b32 s35, 0')
    a.e('s_cmp_lt_u32 s2, 512')
    a.e('s_cbranch_scc1 K1_KGEN')
    a.e('s_endpgm')

    a.label('K1_KGEN')
    for i in range(6):
        a.srd(36 + 4 * i, 10 + 2 * i, 131072)
    a.srd(60, 22, 1024)
    a.e('v_and_b32 v2, 127, v0')
    a.e('v_lshlrev_b32 v3, 1, v2')
    a.e('s_lshl_b32 s4, s2, 8')
    a.e('v_add_u32 v3, s4, v3')
    a.e('s_lshl_b32 s5, s2, 1')
    a.e('v_mov_b32 v4, s5')
    for i in range(6):
        a.e(f'buffer_load_ushort v{8+i}, v3, s[{36+4*i}:{39+4*i}], 0 offen')
    a.e('buffer_load_ushort v14, v4, s[60:63], 0 offen')
    a.e('s_waitcnt vmcnt(0)')
    for i in range(7):
        a.e(f'v_lshlrev_b32 v{8+i}, 16, v{8+i}')
    a.e('v_mul_f32 v14, 0x3fb8aa3b, v14')
    a.e('v_exp_f32 v14, v14')
    a.e('s_nop 1')
    a.e('v_cvt_pk_bf16_f32 v14, v14, v14')
    a.e('v_and_b32 v14, 0xffff0000, v14')
    a.e('v_mul_f32 v16, v14, v8')
    a.e('v_mul_f32 v17, v14, v9')
    a.e('v_mul_f32 v10, v14, v10')
    a.e('v_mul_f32 v11, v14, v11')
    a.e('v_mul_f32 v16, 0x3fb8aa3b, v16')
    a.e('v_mul_f32 v17, 0.15915494, v17')
    a.e('v_mul_f32 v18, v12, v10')
    a.e('v_fma_f32 v18, -v13, v11, v18')
    a.e('v_mul_f32 v19, v12, v11')
    a.e('v_fma_f32 v19, v13, v10, v19')
    a.e('v_mov_b32 v20, v16')
    a.e('v_mov_b32 v21, v17')
    a.e('v_mov_b32 v22, v19')
    a.e('v_mov_b32 v23, v18')
    a.e('v_sub_f32 v19, 0, v19')
    a.e('v_lshlrev_b32 v5, 5, v2')
    a.e('ds_write_b128 v5, v[16:19]')
    a.e('ds_write_b128 v5, v[20:23] offset:16')
    a.e('s_waitcnt lgkmcnt(0)')
    a.e('s_barrier')
    a.e('v_and_b32 v2, 15, v1')
    a.e('v_lshrrev_b32 v3, 4, v1')
    a.e('v_lshlrev_b32 v5, 4, v3')
    a.e('s_lshl_b32 s4, s3, 10')
    a.e('v_add_u32 v5, s4, v5')
    a.e('v_cvt_f32_u32 v7, v2')
    a.e('v_lshlrev_b32 v6, 4, v2')
    a.e('v_cvt_f32_u32 v6, v6')
    a.e('v_add_u32 v9, 8, v2')
    a.e('v_lshlrev_b32 v9, 5, v9')
    a.e('v_cvt_f32_u32 v9, v9')
    a.e('v_and_b32 v8, 1, v3')
    a.e('v_cvt_f32_u32 v11, v8')
    a.e('v_sub_f32 v10, 1.0, v11')
    a.e('v_sub_f32 v11, 0, v11')
    a.e('v_cvt_f32_u32 v8, v8')
    a.e('v_add_f32 v8, 1.0, v8')
    a.e('v_mul_f32 v8, 0x3e800000, v8')
    for r in range(16):
        a.e(f'v_mov_b32 v{64+r}, 0')
    a.e('ds_read_b128 v[32:35], v5')
    a.e('s_mov_b32 s8, 8')
    a.label('K1_KL')
    for t in range(2):
        p = 32 if t % 2 == 0 else 36
        pn = 36 if t % 2 == 0 else 32
        a.e('s_waitcnt lgkmcnt(0)')
        a.e(f'ds_read_b128 v[{pn}:{pn+3}], v5 offset:{64*(t+1)}')
        a.e(f'''
        v_mul_f32 v40, v{p}, v6
        v_mul_f32 v41, v{p}, v7
        v_mul_f32 v45, v{p}, v9
        v_fma_f32 v42, v{p+1}, v6, v8
        v_mul_f32 v43, v{p+1}, v7
        v_mul_f32 v46, v{p+1}, v9
        v_exp_f32 v40, v40
        v_exp_f32 v41, v41
        v_exp_f32 v45, v45
        v_fract_f32 v42, v42
        v_fract_f32 v43, v43
        v_fract_f32 v46, v46
        v_sin_f32 v42, v42
        v_cos_f32 v44, v43
        v_sin_f32 v43, v43
        v_cos_f32 v47, v46
        v_sin_f32 v46, v46
        v_mul_f32 v40, v40, v42
        v_mul_f32 v44, v41, v44
        v_mul_f32 v43, v41, v43
        v_mul_f32 v47, v45, v47
        v_mul_f32 v46, v45, v46
        ''')
        for o in range(4):
            if o > 0:
                a.e('v_mul_f32 v40, v10, v47')
                a.e('v_fma_f32 v40, v11, v46, v40')
            a.e(f'v_mul_f32 v41, v{p+2}, v44')
            a.e(f'v_fma_f32 v41, v{p+3}, v43, v41')
            if o < 3:
                a.e('v_mul_f32 v48, v43, v43')
                a.e('v_mul_f32 v49, v44, v43')
                if o > 0:
                    a.e('v_mul_f32 v50, v46, v46')
                    a.e('v_mul_f32 v51, v47, v46')
            else:
                a.e('s_nop 1')
            a.e(f'v_mfma_f32_16x16x4_f32 v[{64+4*o}:{67+4*o}], v40, v41, v[{64+4*o}:{67+4*o}]')
            if o < 3:
                a.e('v_fma_f32 v44, v44, v44, -v48')
                a.e('v_add_f32 v43, v49, v49')
                if o > 0:
                    a.e('v_fma_f32 v47, v47, v47, -v50')
                    a.e('v_add_f32 v46, v51, v51')
    a.e('v_add_u32 v5, 128, v5')
    a.e('s_sub_u32 s8, s8, 1')
    a.e('s_cmp_lg_u32 s8, 0')
    a.e('s_cbranch_scc1 K1_KL')
    a.e('s_waitcnt lgkmcnt(0)')
    a.e('s_nop 15')
    a.e('v_lshlrev_b32 v12, 4, v1')
    a.e('s_lshl_b32 s4, s3, 12')
    a.e('v_add_u32 v13, s4, v12')
    for o in range(4):
        a.e(f'ds_write_b128 v13, v[{64+4*o}:{67+4*o}] offset:{4352 + 1024*o}')
    a.e('s_waitcnt lgkmcnt(0)')
    a.e('s_barrier')
    a.e('s_lshl_b32 s4, s3, 10')
    a.e('v_add_u32 v13, s4, v12')
    for w in range(4):
        a.e(f'ds_read_b128 v[{64+4*w}:{67+4*w}], v13 offset:{4352 + 4096*w}')
    a.e('s_waitcnt lgkmcnt(0)')
    for r in range(4):
        a.e(f'v_add_f32 v{64+r}, v{64+r}, v{68+r}')
        a.e(f'v_add_f32 v{72+r}, v{72+r}, v{76+r}')
        a.e(f'v_add_f32 v{24+r}, v{64+r}, v{72+r}')
    a.srd_off(36, 32, WS_KC, 0x800000)
    a.e('s_add_u32 s4, s3, 1')
    a.e('s_lshl_b32 s4, s4, 7')
    a.e('s_cmp_eq_u32 s3, 0')
    a.e('s_cselect_b32 s4, 0, s4')
    a.e('s_cselect_b32 s5, 16, 8')
    a.e('s_cmp_eq_u32 s3, 3')
    a.e('s_cselect_b32 s5, 9, s5')
    a.e('s_lshl_b32 s6, s2, 2')
    a.e('s_add_u32 s6, s6, s35')
    a.e('s_lshl_b32 s6, s6, 10')
    a.e('s_add_u32 s4, s4, s6')
    a.e('v_lshlrev_b32 v9, 2, v3')
    a.e('v_lshlrev_b32 v10, 4, v9')
    a.e('v_add_u32 v10, v10, v2')
    a.e('v_add_u32 v10, s4, v10')
    a.e('v_lshlrev_b32 v10, 2, v10')
    for r in range(4):
        a.e(f'v_add_u32 v11, {r}, v9')
        a.e('v_cmp_gt_u32 vcc, s5, v11')
        a.e('s_and_saveexec_b64 s[6:7], vcc')
        a.e(f'buffer_store_dword v{24+r}, v10, s[36:39], 0 offen offset:{64*r}')
        a.e('s_mov_b64 exec, s[6:7]')
    a.e('s_endpgm')

    a.label('K1_LN')
    a.srd(36, 8, 0x200000)
    a.srd_off(40, 32, WS_UT, TSZ)
    a.srd_off(44, 32, WS_XT, TSZ)
    a.e('s_sub_u32 s4, s2, 512')
    a.e('s_lshl_b32 s4, s4, 5')
    a.e('s_lshl_b32 s5, s3, 3')
    a.e('s_add_u32 s4, s4, s5')
    a.e('s_lshl_b32 s5, s4, 10')
    a.e('v_lshlrev_b32 v2, 4, v1')
    a.e('v_add_u32 v2, s5, v2')
    for j in range(8):
        a.e(f'buffer_load_dwordx4 v[{16+4*j}:{19+4*j}], v2, s[36:39], 0 offen')
        a.e('v_add_u32 v2, 0x400, v2')
    a.e('s_waitcnt vmcnt(0)')
    X = lambda j, e: 48 + 8 * j + e
    for j in range(8):
        for k in range(4):
            a.e(f'v_lshlrev_b32 v{X(j,2*k)}, 16, v{16+4*j+k}')
            a.e(f'v_and_b32 v{X(j,2*k+1)}, 0xffff0000, v{16+4*j+k}')
    for j in range(8):
        a.e(f'v_add_f32 v{8+j}, v{X(j,0)}, v{X(j,1)}')
    for e in range(2, 8):
        for j in range(8):
            a.e(f'v_add_f32 v{8+j}, v{8+j}, v{X(j,e)}')
    a.e(f's_mov_b32 s8, {8*ROW}')
    a.e('v_mul_lo_u32 v2, v1, s8')
    a.e('s_lshl_b32 s5, s4, 1')
    a.e('v_add_u32 v2, s5, v2')
    a.e('v_mov_b32 v3, v2')
    for e in range(8):
        o = 112 + 4 * (e % 4)
        for k in range(4):
            a.e(f'v_cvt_pk_bf16_f32 v{o+k}, v{X(2*k,e)}, v{X(2*k+1,e)}')
        a.e(f'buffer_store_dwordx4 v[{o}:{o+3}], v3, s[44:47], 0 offen')
        a.e(f'v_add_u32 v3, {ROW}, v3')
    wave_reduce(a, list(range(8, 16)), 48)
    a.e('s_mov_b32 s6, 0x3b000000')
    M = 16
    for j in range(8):
        a.e(f'v_mov_b32 v{M+j}, s{48+j}')
    for j in range(8):
        a.e(f'v_mul_f32 v{M+j}, s6, v{M+j}')
    for j in range(8):
        a.e(f'v_mov_b32 v{8+j}, 0')
    for e in range(8):
        for j in range(8):
            a.e(f'v_sub_f32 v{24+j}, v{X(j,e)}, v{M+j}')
        for j in range(8):
            a.e(f'v_fma_f32 v{8+j}, v{24+j}, v{24+j}, v{8+j}')
    wave_reduce(a, list(range(8, 16)), 56)
    a.e('s_mov_b32 s7, 0x3727c5ac')
    for j in range(8):
        a.e(f'v_mov_b32 v{8+j}, s{56+j}')
    for j in range(8):
        r = 8 + j
        a.e(f'''
        v_mul_f32 v{r}, s6, v{r}
        v_cvt_pk_bf16_f32 v{r}, v{r}, v{r}
        v_and_b32 v{r}, 0xffff0000, v{r}
        v_add_f32 v{r}, s7, v{r}
        v_cvt_pk_bf16_f32 v{r}, v{r}, v{r}
        v_and_b32 v{r}, 0xffff0000, v{r}
        v_sqrt_f32 v{r}, v{r}
        s_nop 0
        v_cvt_pk_bf16_f32 v{r}, v{r}, v{r}
        v_and_b32 v{r}, 0xffff0000, v{r}
        v_rcp_f32 v{r}, v{r}
        v_cvt_pk_bf16_f32 v{M+j}, v{M+j}, v{M+j}
        v_and_b32 v{M+j}, 0xffff0000, v{M+j}
        ''')
    for j in range(8):
        for e in range(8):
            a.e(f'v_sub_f32 v{X(j,e)}, v{X(j,e)}, v{M+j}')
    for j in range(8):
        for e in range(8):
            a.e(f'v_cvt_pk_bf16_f32 v{X(j,e)}, v{X(j,e)}, v{X(j,e)}')
    for j in range(8):
        for e in range(8):
            a.e(f'v_and_b32 v{X(j,e)}, 0xffff0000, v{X(j,e)}')
    for j in range(8):
        for e in range(8):
            a.e(f'v_mul_f32 v{X(j,e)}, v{X(j,e)}, v{8+j}')
    for e in range(8):
        o = 112 + 4 * (e % 4)
        for k in range(4):
            a.e(f'v_cvt_pk_bf16_f32 v{o+k}, v{X(2*k,e)}, v{X(2*k+1,e)}')
        a.e(f'buffer_store_dwordx4 v[{o}:{o+3}], v2, s[40:43], 0 offen')
        a.e(f'v_add_u32 v2, {ROW}, v2')
    a.e('s_endpgm')

    a.label('K1_TR')
    a.e('s_sub_u32 s4, s2, 576')
    a.e('s_cmp_lt_u32 s4, 56')
    a.e('s_cbranch_scc0 K1_TR2')
    a.srd(36, 28, 512 * 1792 * 2)
    a.srd_off(40, 32, WS_W1T, 512 * 1792 * 2)
    a.e('s_lshl_b32 s4, s4, 2')
    a.e('s_add_u32 s4, s4, s3')
    a.e('s_mul_i32 s5, s4, 2341')
    a.e('s_lshr_b32 s5, s5, 16')
    a.e('s_mul_i32 s6, s5, 28')
    a.e('s_sub_u32 s6, s4, s6')
    a.e('s_mov_b32 s7, 3584')
    a.e('s_mov_b32 s34, 1024')
    a.e('s_branch K1_TRGO')
    a.label('K1_TR2')
    a.srd(36, 30, 512 * 1792 * 2)
    a.srd_off(40, 32, WS_W2T, 512 * 1792 * 2)
    a.e('s_sub_u32 s4, s4, 56')
    a.e('s_lshl_b32 s4, s4, 2')
    a.e('s_add_u32 s4, s4, s3')
    a.e('s_lshr_b32 s5, s4, 3')
    a.e('s_and_b32 s6, s4, 7')
    a.e('s_mov_b32 s7, 1024')
    a.e('s_mov_b32 s34, 3584')
    a.label('K1_TRGO')
    a.e('v_and_b32 v2, 7, v1')
    a.e('v_lshrrev_b32 v3, 3, v1')
    a.e('s_lshl_b32 s5, s5, 6')
    a.e('s_lshl_b32 s6, s6, 6')
    a.e('v_lshlrev_b32 v4, 3, v3')
    a.e('v_add_u32 v4, s5, v4')
    a.e('v_lshlrev_b32 v5, 3, v2')
    a.e('v_add_u32 v5, s6, v5')
    a.e('v_mul_lo_u32 v6, v4, s7')
    a.e('v_lshl_add_u32 v6, v5, 1, v6')
    a.e('v_mul_lo_u32 v7, v5, s34')
    a.e('v_lshl_add_u32 v7, v4, 1, v7')
    for j in range(8):
        a.e(f'buffer_load_dwordx4 v[{16+4*j}:{19+4*j}], v6, s[36:39], 0 offen')
        a.e('v_add_u32 v6, s7, v6')
    a.e('s_mov_b32 s8, 0x05040100')
    a.e('s_mov_b32 s9, 0x07060302')
    a.e('s_waitcnt vmcnt(0)')
    for e in range(8):
        o = 64 + 4 * (e % 2)
        sel = 's8' if e % 2 == 0 else 's9'
        for k in range(4):
            a.e(f'v_perm_b32 v{o+k}, v{16+4*(2*k+1)+e//2}, v{16+4*(2*k)+e//2}, {sel}')
        a.e(f'buffer_store_dwordx4 v[{o}:{o+3}], v7, s[40:43], 0 offen')
        a.e('v_add_u32 v7, s34, v7')
        a.e('s_nop 1')
    a.e('s_endpgm')
    return a.text()
```

```python
from lib import *
CS = 4160
KB = 64
UB = KB + 16 * CS
K2_LDS = UB + 512 + 4096

def gen_k2():
    a = Asm()
    a.e('s_cmp_ge_u32 s2, 512')
    a.e('s_cbranch_scc1 K2_END')
    a.e('s_load_dwordx2 s[8:9], s[0:1], 64')
    a.e('s_load_dwordx2 s[32:33], s[0:1], 112')
    a.e('v_lshrrev_b32 v1, 6, v0')
    a.e('s_nop 1')
    a.e('v_readfirstlane_b32 s3, v1')
    a.e('v_and_b32 v1, 63, v0')
    a.e('s_waitcnt lgkmcnt(0)')
    stamp_init(a, 100)
    stamp(a, 0, 60)
    a.srd_off(36, 32, WS_KC, 0x800000)
    a.srd_off(40, 32, WS_UT, TSZ)
    a.srd_off(44, 32, WS_XT, TSZ)
    a.srd_off(48, 32, WS_HT, TSZ)
    a.srd(52, 8, 1024)
    a.e('s_lshl_b32 s4, s2, 14')
    a.e('s_movk_i32 s16, 0x1000')
    a.e('s_movk_i32 s17, 0x2000')
    a.e('s_movk_i32 s18, 0x3000')
    a.e(f's_mul_i32 s10, s2, {ROW}')
    a.e('v_lshlrev_b32 v2, 4, v0')
    a.e('v_add_u32 v3, s10, v2')
    a.e('buffer_load_dwordx4 v[8:11], v3, s[40:43], 0 offen')
    a.e('s_lshl_b32 s5, s2, 1')
    a.e('v_mov_b32 v4, s5')
    a.e('buffer_load_ushort v6, v4, s[52:55], 0 offen')
    for r in range(4):
        a.e(f'v_mov_b32 v{12+r}, 0')
    a.e('v_cmp_gt_u32 vcc, 32, v0')
    a.e('s_and_saveexec_b64 s[6:7], vcc')
    a.e(f'v_add_u32 v7, {UB}, v2')
    a.e('ds_write_b128 v7, v[12:15]')
    a.e('s_mov_b64 exec, s[6:7]')
    def build(tau_reg):
        a.e(f'v_lshlrev_b32 v16, 3, v{tau_reg}')
        a.e('v_sub_u32 v16, 2055, v16')
        for y in range(15):
            a.e(f'''
            v_subrev_u32 v17, {y}, v16
            v_cvt_f32_i32 v18, v17
            v_cvt_pk_bf16_f32 v18, v18, v18
            v_and_b32 v18, 0xffff, v18
            v_subrev_u32 v18, 17024, v18
            v_cmp_gt_u32 vcc, 128, v17
            s_nop 1
            v_cndmask_b32 v18, v18, v17, vcc
            v_lshlrev_b32 v18, 2, v18
            v_add_u32 v18, s4, v18
            v_cmp_gt_u32 vcc, 2048, v17
            v_mov_b32 v19, 0x7ffffff0
            s_nop 0
            v_cndmask_b32 v18, v19, v18, vcc
            buffer_load_dword v{32+y}, v18, s[36:39], 0 offen
            ''')
        a.e('v_mov_b32 v47, 0')
        a.e('s_waitcnt vmcnt(0)')
        for k in range(8):
            a.e(f'v_cvt_pk_bf16_f32 v{48+k}, v{32+2*k}, v{33+2*k}')
        for k in range(8):
            a.e(f'v_lshlrev_b32 v20, 16, v{48+k}')
            a.e(f'v_and_b32 v21, 0xffff0000, v{48+k}')
            a.e(f'v_sub_f32 v20, v{32+2*k}, v20')
            a.e(f'v_sub_f32 v21, v{33+2*k}, v21')
            a.e(f'v_cvt_pk_bf16_f32 v{56+k}, v20, v21')
        a.e(f'v_lshlrev_b32 v22, 4, v{tau_reg}')
        for part in range(2):
            P = 48 + 8 * part
            for s in range(8):
                y0 = 7 - s
                off = KB + (8 * part + s) * CS
                if y0 % 2 == 0:
                    k = y0 // 2
                    a.e(f'ds_write_b128 v22, v[{P+k}:{P+k+3}] offset:{off}') if (P + k) % 2 == 0 else None
                    if (P + k) % 2 != 0:
                        for i in range(4):
                            a.e(f'v_mov_b32 v{24+i}, v{P+k+i}')
                        a.e(f'ds_write_b128 v22, v[24:27] offset:{off}')
                else:
                    k = y0 // 2
                    for i in range(4):
                        a.e(f'v_alignbit_b32 v{28+i}, v{P+k+i+1}, v{P+k+i}, 16')
                    a.e(f'ds_write_b128 v22, v[28:31] offset:{off}')
    a.e('v_add_u32 v5, 1, v0')
    build(5)
    a.e('v_mul_u32_u24 v16, 0x5556, v0')
    a.e('v_lshrrev_b32 v16, 16, v16')
    a.e('v_mul_u32_u24 v17, 3, v16')
    a.e('v_sub_u32 v17, v0, v17')
    a.e(f's_mov_b32 s11, {CS}')
    a.e('v_mul_lo_u32 v16, v16, s11')
    a.e('v_lshl_add_u32 v16, v17, 4, v16')
    a.e('v_cmp_gt_u32 vcc, 48, v0')
    a.e('s_and_saveexec_b64 s[6:7], vcc')
    a.e(f'ds_write_b128 v16, v[12:15] offset:{KB + 257*16}')
    a.e('s_mov_b64 exec, s[6:7]')
    a.e(f'v_add_u32 v7, {UB}, v2')
    a.e('ds_write_b128 v7, v[8:11] offset:512')
    a.e('s_waitcnt lgkmcnt(0)')
    a.e('s_barrier')
    stamp(a, 1, 60)
    a.e('v_and_b32 v2, 15, v1')
    a.e('v_lshrrev_b32 v3, 4, v1')
    a.e('v_and_b32 v4, 7, v1')
    a.e('v_mul_u32_u24 v5, v4, ' + str(CS)) if False else None
    a.e(f's_mov_b32 s6, {CS}')
    a.e('v_mul_lo_u32 v5, v4, s6')
    a.e('v_lshrrev_b32 v7, 3, v2')
    a.e('v_sub_u32 v7, v3, v7')
    a.e('v_lshlrev_b32 v7, 4, v7')
    a.e('v_add_u32 v5, v5, v7')
    a.e(f'v_add_u32 v5, {KB + 4096 - 32}, v5')
    a.e('v_lshlrev_b32 v7, 5, v2')
    a.e('v_lshl_add_u32 v7, v3, 4, v7')
    a.e(f'v_add_u32 v7, {UB+512-32}, v7')
    a.e('s_lshl_b32 s6, s3, 9')
    a.e('v_add_u32 v8, s6, v7')
    a.e('s_sub_u32 s7, 7, s3')
    a.e('s_lshl_b32 s7, s7, 9')
    a.e('v_add_u32 v9, s7, v7')
    for r in range(8):
        a.e(f'v_mov_b32 v{16+r}, 0')
    LO = 8 * CS
    def reads(S, small):
        a.e(f'ds_read_b128 v[{S}:{S+3}], v5')
        a.e(f'ds_read_b128 v[{S+4}:{S+7}], v5 offset:{LO}')
        a.e(f'ds_read_b128 v[{S+8}:{S+11}], v9')
        if small:
            a.e(f'ds_read_b128 v[{S+12}:{S+15}], v8')
    def adv():
        a.e('v_subrev_u32 v5, 64, v5')
        a.e('v_subrev_u32 v8, 64, v8')
        a.e('v_subrev_u32 v9, 64, v9')
    def mm(S, small):
        a.e(f'v_mfma_f32_16x16x32_bf16 v[20:23], v[{S}:{S+3}], v[{S+8}:{S+11}], v[20:23]')
        if small:
            a.e(f'v_mfma_f32_16x16x32_bf16 v[16:19], v[{S}:{S+3}], v[{S+12}:{S+15}], v[16:19]')
        a.e(f'v_mfma_f32_16x16x32_bf16 v[20:23], v[{S+4}:{S+7}], v[{S+8}:{S+11}], v[20:23]')
        if small:
            a.e(f'v_mfma_f32_16x16x32_bf16 v[16:19], v[{S+4}:{S+7}], v[{S+12}:{S+15}], v[16:19]')
    reads(32, True)
    a.e('s_lshl_b32 s8, s3, 2')
    a.e('s_add_u32 s8, s8, 4')
    a.label('K2_L1')
    adv(); reads(48, True)
    a.e('s_waitcnt lgkmcnt(4)')
    mm(32, True)
    adv(); reads(32, True)
    a.e('s_waitcnt lgkmcnt(4)')
    mm(48, True)
    a.e('s_sub_u32 s8, s8, 1')
    a.e('s_cmp_lg_u32 s8, 0')
    a.e('s_cbranch_scc1 K2_L1')
    a.e('s_lshl_b32 s8, s3, 3')
    a.e('s_sub_u32 s8, 28, s8')
    a.label('K2_L2')
    adv(); reads(48, False)
    a.e('s_waitcnt lgkmcnt(3)')
    mm(32, False)
    adv(); reads(32, False)
    a.e('s_waitcnt lgkmcnt(3)')
    mm(48, False)
    a.e('s_sub_u32 s8, s8, 1')
    a.e('s_cmp_lg_u32 s8, 0')
    a.e('s_cbranch_scc1 K2_L2')
    a.e('s_waitcnt lgkmcnt(0)')
    stamp(a, 2, 60)
    a.e('v_lshlrev_b32 v7, 5, v2')
    a.e('v_lshl_add_u32 v7, v3, 3, v7')
    a.e('v_add_u32 v7, s10, v7')
    a.e('v_add_u32 v8, s6, v7')
    a.e('v_add_u32 v9, s7, v7')
    a.e('buffer_load_dwordx2 v[32:33], v8, s[40:43], 0 offen')
    a.e('buffer_load_dwordx2 v[34:35], v8, s[44:47], 0 offen')
    a.e('buffer_load_dwordx2 v[36:37], v9, s[40:43], 0 offen')
    a.e('buffer_load_dwordx2 v[38:39], v9, s[44:47], 0 offen')
    a.e('v_lshlrev_b32 v6, 16, v6')
    a.e('s_nop 7')
    a.e('s_waitcnt vmcnt(0)')
    for (acc, U, X, adr) in ((16, 32, 34, 8), (20, 36, 38, 9)):
        for r in range(4):
            op = 'v_lshlrev_b32 v40, 16, ' if r % 2 == 0 else 'v_and_b32 v40, 0xffff0000, '
            a.e(op + f'v{U + r//2}')
            op = 'v_lshlrev_b32 v41, 16, ' if r % 2 == 0 else 'v_and_b32 v41, 0xffff0000, '
            a.e(op + f'v{X + r//2}')
            a.e(f'''
            v_mul_f32 v40, v40, v6
            v_cvt_pk_bf16_f32 v40, v40, v40
            v_and_b32 v40, 0xffff0000, v40
            v_cvt_pk_bf16_f32 v42, v{acc+r}, v{acc+r}
            v_and_b32 v42, 0xffff0000, v42
            v_add_f32 v40, v40, v42
            v_cvt_pk_bf16_f32 v40, v40, v40
            v_and_b32 v40, 0xffff0000, v40
            v_add_f32 v{44+r}, v40, v41
            ''')
        a.e('v_cvt_pk_bf16_f32 v48, v44, v45')
        a.e('v_cvt_pk_bf16_f32 v49, v46, v47')
        a.e(f'buffer_store_dwordx2 v[48:49], v{adr}, s[48:51], 0 offen')
        a.e('s_nop 1')
    a.e('s_waitcnt vmcnt(0)')
    stamp(a, 3, 60)
    a.label('K2_END')
    a.e('s_endpgm')
    return a.text()
```

```python
from lib import *
K3_LDS = 65536 + 3 * 32768
PART = 0
STAT = 8192

def gen_k3():
    a = Asm()
    a.e('s_cmp_ge_u32 s2, 224')
    a.e('s_cbranch_scc1 K3_END')
    a.e('s_load_dwordx2 s[32:33], s[0:1], 112')
    a.e('v_lshrrev_b32 v1, 6, v0')
    a.e('s_nop 1')
    a.e('v_readfirstlane_b32 s3, v1')
    a.e('v_and_b32 v1, 63, v0')
    a.e('s_lshr_b32 s6, s2, 3')
    a.e('s_mul_i32 s4, s6, 9363')
    a.e('s_lshr_b32 s4, s4, 16')
    a.e('s_mul_i32 s5, s4, 7')
    a.e('s_sub_u32 s5, s6, s5')
    a.e('s_and_b32 s6, s2, 7')
    a.e('s_lshl_b32 s6, s6, 2')
    a.e('s_add_u32 s4, s4, s6')
    a.e('s_waitcnt lgkmcnt(0)')
    stamp_init(a, 100)
    stamp(a, 0)
    a.srd_off(36, 32, WS_HT, TSZ)
    a.srd_off(40, 32, WS_W1T, 512 * 1792 * 2)
    a.srd_off(44, 32, WS_G, 2048 * 1792 * 2)
    a.e('v_and_b32 v2, 31, v1')
    a.e('v_lshrrev_b32 v3, 5, v1')
    a.e('s_lshl_b32 s6, s5, 8')
    a.e('v_lshrrev_b32 v4, 3, v1')
    a.e('v_and_b32 v5, 7, v1')
    a.e('s_lshl_b32 s7, s3, 6')
    a.e('s_add_u32 s7, s7, s6')
    for i in range(8):
        a.e(f'v_add_u32 v6, {8*i}, v4')
        a.e('v_lshrrev_b32 v7, 1, v6')
        a.e('v_and_b32 v7, 7, v7')
        a.e('v_xor_b32 v7, v7, v5')
        a.e('v_add_u32 v6, s7, v6')
        a.e('v_lshlrev_b32 v6, 10, v6')
        a.e(f'v_lshl_add_u32 v{32+i}, v7, 4, v6')
    a.e('s_lshl_b32 s7, s3, 13')
    a.e('s_add_u32 s7, s7, 0x10000')
    def dma():
        a.e('s_add_u32 s12, s16, s7')
        for i in range(8):
            a.e(f's_add_u32 m0, s12, {1024*i}')
            a.e('s_nop 0')
            a.e(f'buffer_load_dwordx4 v{32+i}, s[40:43], s13 offen lds')
        a.e('s_add_u32 s13, s13, 128')
        a.e('s_add_u32 s16, s16, 32768')
        a.e('s_cmp_eq_u32 s16, 98304')
        a.e('s_cselect_b32 s16, 0, s16')
    a.e('s_mov_b32 s13, 0')
    a.e('s_mov_b32 s16, 0')
    dma()
    dma()
    a.e('v_and_b32 v6, 7, v0')
    a.e('v_lshrrev_b32 v7, 3, v0')
    a.e(f's_mov_b32 s8, {2*ROW}')
    a.e('v_mul_lo_u32 v8, v7, s8')
    a.e('v_lshl_add_u32 v8, v6, 4, v8')
    a.e('s_lshl_b32 s8, s4, 7')
    a.e('v_add_u32 v8, s8, v8')
    a.e('v_mov_b32 v14, v8')
    def unpack(dst, src, e):
        if e % 2 == 0:
            a.e(f'v_lshlrev_b32 v{dst}, 16, v{src + e//2}')
        else:
            a.e(f'v_and_b32 v{dst}, 0xffff0000, v{src + e//2}')
    a.e(f's_mov_b32 s15, {ROW}')
    for it in range(8):
        a.e(f'buffer_load_dwordx4 v[{128+8*it}:{131+8*it}], v8, s[36:39], 0 offen')
        a.e(f'buffer_load_dwordx4 v[{132+8*it}:{135+8*it}], v8, s[36:39], s15 offen')
        a.e(f'v_add_u32 v8, {64*ROW}, v8')
    for e in range(16):
        a.e(f'v_mov_b32 v{16+e}, 0')
    for k in range(16):
        a.e(f's_waitcnt vmcnt({15-k})')
        for e in range(8):
            t = 10 + (e % 2)
            unpack(t, 128 + 4 * k, e)
            a.e(f'v_add_f32 v{16+e}, v{16+e}, v{t}')
            a.e(f'v_fma_f32 v{24+e}, v{t}, v{t}, v{24+e}')
    stamp(a, 2)
    PB = 0
    a.e('v_lshlrev_b32 v10, 9, v7')
    a.e('v_lshl_add_u32 v10, v6, 5, v10')
    a.e(f'v_add_u32 v10, {PB}, v10')
    a.e('ds_write_b128 v10, v[16:19]')
    a.e('ds_write_b128 v10, v[20:23] offset:16')
    a.e('ds_write_b128 v10, v[24:27] offset:256')
    a.e('ds_write_b128 v10, v[28:31] offset:272')
    a.e('s_waitcnt lgkmcnt(0)')
    a.e('s_barrier')
    a.e('v_cmp_gt_u32 vcc, 128, v0')
    a.e('s_and_saveexec_b64 s[10:11], vcc')
    a.e('v_lshlrev_b32 v10, 2, v0')
    a.e(f'v_add_u32 v10, {PB}, v10')
    for k in range(32):
        a.e(f'ds_read_b32 v{192+k}, v10 offset:{512*k}')
    a.e('s_waitcnt lgkmcnt(0)')
    for k in range(1, 32):
        a.e(f'v_add_f32 v192, v192, v{192+k}')
    a.e('ds_write_b32 v10, v192 offset:16384')
    a.e('s_mov_b64 exec, s[10:11]')
    a.e('s_waitcnt lgkmcnt(0)')
    a.e('s_barrier')
    a.e('v_lshlrev_b32 v10, 5, v6')
    a.e(f'v_add_u32 v10, {PB+16384}, v10')
    a.e('ds_read_b128 v[56:59], v10')
    a.e('ds_read_b128 v[60:63], v10 offset:16')
    a.e('ds_read_b128 v[48:51], v10 offset:256')
    a.e('ds_read_b128 v[52:55], v10 offset:272')
    a.e('s_waitcnt lgkmcnt(0)')
    a.e('s_barrier')
    a.e('s_mov_b32 s9, 0x3b000000')
    a.e('s_mov_b32 s10, 0x3727c5ac')
    for j in range(8):
        r = 48 + j
        m = 56 + j
        a.e(f'''
        v_mul_f32 v{m}, s9, v{m}
        v_mul_f32 v{r}, s9, v{r}
        v_fma_f32 v{r}, -v{m}, v{m}, v{r}
        v_max_f32 v{r}, 0, v{r}
        v_cvt_pk_bf16_f32 v{r}, v{r}, v{r}
        v_and_b32 v{r}, 0xffff0000, v{r}
        v_add_f32 v{r}, s10, v{r}
        v_cvt_pk_bf16_f32 v{r}, v{r}, v{r}
        v_and_b32 v{r}, 0xffff0000, v{r}
        v_sqrt_f32 v{r}, v{r}
        s_nop 0
        v_cvt_pk_bf16_f32 v{r}, v{r}, v{r}
        v_and_b32 v{r}, 0xffff0000, v{r}
        v_rcp_f32 v{r}, v{r}
        v_cvt_pk_bf16_f32 v{m}, v{m}, v{m}
        v_and_b32 v{m}, 0xffff0000, v{m}
        ''')
    stamp(a, 3)
    a.e('v_lshrrev_b32 v12, 2, v7')
    a.e('v_and_b32 v13, 3, v7')
    a.e('v_lshlrev_b32 v13, 2, v13')
    a.e('v_lshl_add_u32 v13, v6, 13, v13')
    for e in range(8):
        a.e(f'v_xor_b32 v14, {e}, v6')
        a.e('v_xor_b32 v14, v14, v12')
        a.e(f'v_lshl_add_u32 v{24+e}, v14, 4, v13')
    for it in range(8):
        for e in range(8):
            unpack(11, 128 + 8 * it, e)
            unpack(12, 132 + 8 * it, e)
            a.e(f'''
            v_sub_f32 v11, v11, v{56+e}
            v_sub_f32 v12, v12, v{56+e}
            v_cvt_pk_bf16_f32 v11, v11, v12
            v_lshlrev_b32 v12, 16, v11
            v_and_b32 v11, 0xffff0000, v11
            v_mul_f32 v12, v12, v{48+e}
            v_mul_f32 v11, v11, v{48+e}
            v_cvt_pk_bf16_f32 v11, v12, v11
            ds_write_b32 v{24+e}, v11 offset:{1024*e + 128*it}
            ''')
    for rt in range(2):
        a.e(f'v_add_u32 v11, {32*rt}, v2')
        a.e('v_lshrrev_b32 v12, 3, v11')
        a.e('v_xor_b32 v12, v12, v11')
        a.e('v_and_b32 v12, 7, v12')
        for s in range(4):
            a.e(f'v_lshl_add_u32 v13, v3, 2, {s}')
            a.e('v_xor_b32 v13, v13, v12')
            a.e('v_lshlrev_b32 v13, 4, v13')
            a.e(f'v_lshl_add_u32 v{16+4*rt+s}, v11, 10, v13')
    for r in range(64):
        a.e(f'v_mov_b32 v{160+r}, 0')
    a.e('v_lshrrev_b32 v12, 1, v2')
    a.e('v_and_b32 v12, 7, v12')
    a.e('s_lshl_b32 s9, s3, 13')
    a.e('s_add_u32 s9, s9, 0x10000')
    for st in range(4):
        a.e(f'v_lshl_add_u32 v13, v3, 2, {st}')
        a.e('v_xor_b32 v13, v13, v12')
        a.e('v_lshlrev_b32 v13, 4, v13')
        a.e(f'v_lshl_add_u32 v{40+st}, v2, 7, v13')
        a.e(f'v_add_u32 v{40+st}, s9, v{40+st}')
    a.e('s_mov_b32 s17, 0')
    stamp(a, 4)
    a.e('s_mov_b32 s14, 8')
    a.label('K3_L')
    a.e('s_waitcnt vmcnt(8) lgkmcnt(0)')
    a.e('s_barrier')
    for st in range(4):
        a.e(f'v_add_u32 v{48+st}, s17, v{40+st}')
    for st in range(4):
        for rt in range(2):
            r = 128 + 16 * rt + 4 * st
            a.e(f'ds_read_b128 v[{r}:{r+3}], v{16+4*rt+st}')
        for ct in range(2):
            r = 96 + 16 * ct + 4 * st
            a.e(f'ds_read_b128 v[{r}:{r+3}], v{48+st} offset:{4096*ct}')
    dma()
    a.e('s_add_u32 s17, s17, 32768')
    a.e('s_cmp_eq_u32 s17, 98304')
    a.e('s_cselect_b32 s17, 0, s17')
    for st in range(4):
        a.e(f's_waitcnt lgkmcnt({12 - 4*st})')
        for rt in range(2):
            for ct in range(2):
                acc = 160 + 16 * (2 * rt + ct)
                a.e(f'v_mfma_f32_32x32x16_bf16 v[{acc}:{acc+15}], v[{128+16*rt+4*st}:{131+16*rt+4*st}], v[{96+16*ct+4*st}:{96+16*ct+4*st+3}], v[{acc}:{acc+15}]')
    for k in range(8):
        a.e(f'v_add_u32 v{16+k}, 128, v{16+k}')
    a.e('s_sub_u32 s14, s14, 1')
    a.e('s_cmp_lg_u32 s14, 0')
    a.e('s_cbranch_scc1 K3_L')
    a.e('s_nop 15')
    a.e('s_waitcnt vmcnt(0) lgkmcnt(0)')
    a.e('s_barrier')
    stamp(a, 5)
    a.e('v_lshlrev_b32 v11, 2, v3')
    a.e('s_movk_i32 s9, 1040')
    a.e('v_mul_lo_u32 v11, v11, s9')
    a.e('v_lshl_add_u32 v11, v2, 2, v11')
    a.e('s_lshl_b32 s9, s3, 8')
    a.e('v_add_u32 v11, s9, v11')
    a.e(f'v_add_u32 v12, {32*1040}, v11')
    for rt in range(2):
        for ct in range(2):
            acc = 160 + 16 * (2 * rt + ct)
            for r in range(16):
                row = 8 * (r // 4) + (r % 4)
                a.e(f'ds_write_b32 v{11+rt}, v{acc+r} offset:{row*1040 + 128*ct}')
    a.e('s_waitcnt lgkmcnt(0)')
    a.e('s_barrier')
    a.e('v_lshrrev_b32 v11, 5, v0')
    a.e('v_and_b32 v12, 31, v0')
    a.e('s_movk_i32 s9, 1040')
    a.e('v_mul_lo_u32 v13, v11, s9')
    a.e('v_lshl_add_u32 v13, v12, 5, v13')
    a.e('s_lshl_b32 s8, s4, 6')
    a.e('v_add_u32 v11, s8, v11')
    a.e('s_movk_i32 s9, 3584')
    a.e('v_mul_lo_u32 v11, v11, s9')
    a.e('v_lshl_add_u32 v11, v12, 4, v11')
    a.e('s_lshl_b32 s9, s5, 9')
    a.e('v_add_u32 v11, s9, v11')
    stamp(a, 6)
    a.e('s_mov_b32 s14, 8')
    a.label('K3_E')
    a.e('ds_read_b128 v[64:67], v13')
    a.e('ds_read_b128 v[68:71], v13 offset:16')
    a.e(f'v_add_u32 v13, {8*1040}, v13')
    a.e('s_waitcnt lgkmcnt(0)')
    for e in range(8):
        a.e(f'v_cvt_pk_bf16_f32 v{64+e}, v{64+e}, v{64+e}')
        a.e(f'v_and_b32 v{64+e}, 0xffff0000, v{64+e}')
        a.e(f'v_mul_f32 v{72+e}, 0xbfb8aa3b, v{64+e}')
        a.e(f'v_exp_f32 v{72+e}, v{72+e}')
    for e in range(8):
        a.e(f'v_add_f32 v{72+e}, 1.0, v{72+e}')
    for e in range(8):
        a.e(f'v_rcp_f32 v{72+e}, v{72+e}')
    a.e('s_nop 0')
    for e in range(8):
        a.e(f'v_mul_f32 v{64+e}, v{64+e}, v{72+e}')
    for k in range(4):
        a.e(f'v_cvt_pk_bf16_f32 v{80+k}, v{64+2*k}, v{65+2*k}')
    a.e('buffer_store_dwordx4 v[80:83], v11, s[44:47], 0 offen')
    a.e(f'v_add_u32 v11, {8*3584}, v11')
    a.e('s_sub_u32 s14, s14, 1')
    a.e('s_cmp_lg_u32 s14, 0')
    a.e('s_cbranch_scc1 K3_E')
    a.e('s_waitcnt vmcnt(0)')
    stamp(a, 7)
    a.label('K3_END')
    a.e('s_endpgm')
    return a.text()

K4_LDS = 3 * 32768
def gen_k4():
    a = Asm()
    a.e('s_cmp_ge_u32 s2, 256')
    a.e('s_cbranch_scc1 K4_END')
    a.e('s_load_dwordx2 s[8:9], s[0:1], 96')
    a.e('s_load_dwordx2 s[32:33], s[0:1], 112')
    a.e('v_lshrrev_b32 v1, 6, v0')
    a.e('s_nop 1')
    a.e('v_readfirstlane_b32 s3, v1')
    a.e('v_and_b32 v1, 63, v0')
    a.e('s_and_b32 s4, s2, 7')
    a.e('s_lshl_b32 s4, s4, 2')
    a.e('s_lshr_b32 s5, s2, 3')
    a.e('s_and_b32 s5, s5, 3')
    a.e('s_add_u32 s4, s4, s5')
    a.e('s_lshl_b32 s4, s4, 6')
    a.e('s_lshr_b32 s5, s2, 5')
    a.e('s_lshl_b32 s5, s5, 6')
    a.e('s_waitcnt lgkmcnt(0)')
    stamp_init(a, 100)
    stamp(a, 0, 16)
    a.srd_off(36, 32, WS_HT, TSZ)
    a.srd_off(40, 32, WS_W2T, 512 * 1792 * 2)
    a.srd_off(44, 32, WS_G, 2048 * 1792 * 2)
    a.srd(48, 8, 0x200000)
    a.e('v_and_b32 v2, 31, v1')
    a.e('v_lshrrev_b32 v3, 5, v1')
    a.e('v_lshrrev_b32 v4, 4, v1')
    a.e('v_and_b32 v5, 15, v1')
    a.e('s_movk_i32 s9, 3584')
    a.e('s_lshl_b32 s6, s3, 4')
    for i in range(4):
        a.e(f'v_add_u32 v6, {4*i}, v4')
        a.e('v_xor_b32 v7, v6, v5')
        a.e('v_add_u32 v6, s6, v6')
        a.e('v_add_u32 v8, s4, v6')
        a.e('v_mul_lo_u32 v8, v8, s9')
        a.e(f'v_lshl_add_u32 v{20+i}, v7, 4, v8')
        a.e('v_add_u32 v8, s5, v6')
        a.e('v_mul_lo_u32 v8, v8, s9')
        a.e(f'v_lshl_add_u32 v{24+i}, v7, 4, v8')
    a.e('s_lshl_b32 s7, s3, 12')
    def dma():
        for i in range(4):
            a.e(f's_add_u32 s12, s16, s7')
            a.e(f's_add_u32 m0, s12, {1024*i}')
            a.e('s_nop 0')
            a.e(f'buffer_load_dwordx4 v{20+i}, s[44:47], s13 offen lds')
            a.e(f's_add_u32 m0, s12, {16384 + 1024*i}')
            a.e('s_nop 0')
            a.e(f'buffer_load_dwordx4 v{24+i}, s[40:43], s13 offen lds')
        a.e('s_add_u32 s13, s13, 256')
        a.e('s_add_u32 s16, s16, 32768')
        a.e('s_cmp_eq_u32 s16, 98304')
        a.e('s_cselect_b32 s16, 0, s16')
    a.e('s_mov_b32 s13, 0')
    a.e('s_mov_b32 s16, 0')
    dma()
    dma()
    a.e('s_lshl_b32 s6, s3, 2')
    for st in range(2):
        a.e(f'v_add_u32 v6, {2*st}, v3')
        a.e('v_add_u32 v6, s6, v6')
        a.e('v_xor_b32 v6, v6, v5')
        a.e('v_lshlrev_b32 v6, 4, v6')
        a.e(f'v_lshl_add_u32 v{28+st}, v2, 8, v6')
    a.e('v_lshrrev_b32 v9, 2, v0')
    a.e('v_and_b32 v10, 3, v0')
    a.e('v_lshlrev_b32 v10, 4, v10')
    for r in range(64):
        a.e(f'v_mov_b32 v{160+r}, 0')
    a.e('s_mov_b32 s17, 0')
    stamp(a, 1, 16)
    a.e('s_mov_b32 s14, 14')
    a.label('K4_L')
    a.e('s_waitcnt vmcnt(8)')
    a.e('s_barrier')
    a.e('v_add_u32 v30, s17, v28')
    a.e('v_add_u32 v31, s17, v29')
    for st in range(2):
        for t in range(2):
            a.e(f'ds_read_b128 v[{64+16*st+4*t}:{67+16*st+4*t}], v{30+st} offset:{8192*t}')
            a.e(f'ds_read_b128 v[{72+16*st+4*t}:{75+16*st+4*t}], v{30+st} offset:{16384+8192*t}')
    dma()
    a.e('s_add_u32 s17, s17, 32768')
    a.e('s_cmp_eq_u32 s17, 98304')
    a.e('s_cselect_b32 s17, 0, s17')
    for st in range(2):
        a.e(f's_waitcnt lgkmcnt({4 - 4*st})')
        for rt in range(2):
            for ct in range(2):
                acc = 160 + 16 * (2 * rt + ct)
                A = 64 + 16 * st + 4 * rt
                B = 72 + 16 * st + 4 * ct
                a.e(f'v_mfma_f32_32x32x16_bf16 v[{acc}:{acc+15}], v[{A}:{A+3}], v[{B}:{B+3}], v[{acc}:{acc+15}]')
    a.e('s_sub_u32 s14, s14, 1')
    a.e('s_cmp_lg_u32 s14, 0')
    a.e('s_cbranch_scc1 K4_L')
    a.e('v_add_u32 v11, s5, v10')
    a.e(f's_mov_b32 s10, {ROW}')
    a.e('v_mul_lo_u32 v11, v11, s10')
    a.e('v_add_u32 v12, s4, v9')
    a.e('v_lshl_add_u32 v11, v12, 1, v11')
    for e in range(16):
        a.e(f'buffer_load_ushort v{32+e}, v11, s[36:39], 0 offen')
        a.e(f'v_add_u32 v11, {ROW}, v11')
    a.e('s_waitcnt vmcnt(16)')
    a.e('s_barrier')
    stamp(a, 2, 16)
    a.e('s_lshl_b32 s6, s3, 14')
    a.e('v_lshlrev_b32 v8, 10, v3')
    a.e('v_lshl_add_u32 v8, v2, 2, v8')
    a.e('v_add_u32 v8, s6, v8')
    for rt in range(2):
        for ct in range(2):
            acc = 160 + 16 * (2 * rt + ct)
            for r in range(16):
                row = 32 * rt + 8 * (r // 4) + (r % 4)
                a.e(f'ds_write_b32 v8, v{acc+r} offset:{row*256 + 128*ct}')
    a.e('s_waitcnt lgkmcnt(0)')
    a.e('s_barrier')
    a.e('v_lshlrev_b32 v13, 8, v9')
    a.e('v_lshl_add_u32 v13, v10, 2, v13')
    for w in range(4):
        for k in range(4):
            r = 64 + 16 * w + 4 * k
            a.e(f'ds_read_b128 v[{r}:{r+3}], v13 offset:{16384*w + 16*k}')
    a.e('s_waitcnt vmcnt(0) lgkmcnt(0)')
    for e in range(16):
        a.e(f'''
        v_add_f32 v{64+e}, v{64+e}, v{80+e}
        v_add_f32 v{96+e}, v{96+e}, v{112+e}
        v_add_f32 v{64+e}, v{64+e}, v{96+e}
        v_cvt_pk_bf16_f32 v{64+e}, v{64+e}, v{64+e}
        v_and_b32 v{64+e}, 0xffff0000, v{64+e}
        v_lshlrev_b32 v{32+e}, 16, v{32+e}
        v_add_f32 v{64+e}, v{64+e}, v{32+e}
        ''')
    for k in range(8):
        a.e(f'v_cvt_pk_bf16_f32 v{48+k}, v{64+2*k}, v{65+2*k}')
    a.e('v_lshlrev_b32 v14, 10, v12')
    a.e('v_add_u32 v15, s5, v10')
    a.e('v_lshl_add_u32 v14, v15, 1, v14')
    a.e('buffer_store_dwordx4 v[48:51], v14, s[48:51], 0 offen')
    a.e('buffer_store_dwordx4 v[52:55], v14, s[48:51], 0 offen offset:16')
    a.e('s_waitcnt vmcnt(0)')
    stamp(a, 3, 16)
    a.label('K4_END')
    a.e('s_endpgm')
    return a.text()
```

```python
_LBL = [0]
class Asm:
    def __init__(self):
        self.lines = []
        self.lbl = 0
    def e(self, s):
        for l in s.strip('\n').split('\n'):
            self.lines.append('    ' + l.strip())
    def label(self, name):
        self.lines.append(name + ':')
    def newlabel(self, p='L'):
        _LBL[0] += 1
        return f'{p}_{_LBL[0]}'
    def raw(self, s):
        self.lines.append(s)
    def srd(self, d, base, nbytes):
        self.e(f's_mov_b32 s{d}, s{base}')
        self.e(f's_and_b32 s{d+1}, s{base+1}, 0xffff')
        self.e(f's_mov_b32 s{d+2}, {nbytes}')
        self.e(f's_mov_b32 s{d+3}, 0x00020000')
    def srd_off(self, d, base, off, nbytes):
        self.e(f's_add_u32 s{d}, s{base}, {off}')
        self.e(f's_addc_u32 s{d+1}, s{base+1}, 0')
        self.e(f's_and_b32 s{d+1}, s{d+1}, 0xffff')
        self.e(f's_mov_b32 s{d+2}, {nbytes}')
        self.e(f's_mov_b32 s{d+3}, 0x00020000')
    def text(self):
        return '\n'.join(self.lines) + '\n'

def kernel_header(name):
    return f'''.globl {name}
.p2align 8
.type {name},@function
{name}:
'''
def kernel_desc(name, vgpr, sgpr=102):
    acc = (vgpr + 3) // 4 * 4
    return f'''.amdhsa_kernel {name}
  .amdhsa_next_free_vgpr {vgpr}
  .amdhsa_next_free_sgpr {sgpr}
  .amdhsa_accum_offset {acc}
  .amdhsa_group_segment_fixed_size 0
  .amdhsa_kernarg_size 120
  .amdhsa_user_sgpr_count 2
  .amdhsa_user_sgpr_kernarg_segment_ptr 1
  .amdhsa_system_sgpr_workgroup_id_x 1
.end_amdhsa_kernel
'''
ROW = 4224
TSZ = 512 * ROW
WS_UT = 0x000000
WS_XT = 0x240000
WS_KC = 0x1400000
WS_W1T = 0x680000
WS_W2T = 0x880000
WS_HT = 0xA80000
WS_G = 0xCC0000

import os
STAMPS = bool(os.environ.get('STAMPS'))
def stamp_init(a, wg):
    if not STAMPS: return
    a.e('s_load_dwordx2 s[96:97], s[0:1], 104')
    a.e('s_waitcnt lgkmcnt(0)')
    a.srd(92, 96, 256)
    a.e('v_readfirstlane_b32 s91, v0')
    a.e(f's_cmp_eq_u32 s2, {wg}')
    a.e('s_cselect_b32 s90, 1, 0')
    a.e('s_cmp_lt_u32 s91, 64')
    a.e('s_cselect_b32 s91, 1, 0')
    a.e('s_and_b32 s90, s90, s91')
def stamp(a, idx, r=46):
    if not STAMPS: return
    L = a.newlabel('ST')
    a.e('s_cmp_eq_u32 s90, 0')
    a.e(f's_cbranch_scc1 {L}')
    a.e('s_memtime s[88:89]')
    a.e('s_waitcnt lgkmcnt(0)')
    a.e(f'v_mov_b32 v{r+1}, s88')
    a.e(f'v_mov_b32 v{r}, {4*idx}')
    a.e(f'buffer_store_dword v{r+1}, v{r}, s[92:95], 0 offen')
    a.label(L)
```

```python
from lib import *
K3_LDS = 65536 + 3 * 32768
PART = 0
STAT = 8192

def gen_k3():
    a = Asm()
    a.e('s_cmp_ge_u32 s2, 224')
    a.e('s_cbranch_scc1 K3_END')
    a.e('s_load_dwordx2 s[32:33], s[0:1], 112')
    a.e('v_lshrrev_b32 v1, 6, v0')
    a.e('s_nop 1')
    a.e('v_readfirstlane_b32 s3, v1')
    a.e('v_and_b32 v1, 63, v0')
    a.e('s_lshr_b32 s6, s2, 3')
    a.e('s_mul_i32 s4, s6, 9363')
    a.e('s_lshr_b32 s4, s4, 16')
    a.e('s_mul_i32 s5, s4, 7')
    a.e('s_sub_u32 s5, s6, s5')
    a.e('s_and_b32 s6, s2, 7')
    a.e('s_lshl_b32 s6, s6, 2')
    a.e('s_add_u32 s4, s4, s6')
    a.e('s_waitcnt lgkmcnt(0)')
    stamp_init(a, 100)
    stamp(a, 0)
    a.srd_off(36, 32, WS_HT, TSZ)
    a.srd_off(40, 32, WS_W1T, 512 * 1792 * 2)
    a.srd_off(44, 32, WS_G, 2048 * 1792 * 2)
    a.e('v_and_b32 v2, 31, v1')
    a.e('v_lshrrev_b32 v3, 5, v1')
    a.e('s_lshl_b32 s6, s5, 8')
    a.e('v_lshrrev_b32 v4, 3, v1')
    a.e('v_and_b32 v5, 7, v1')
    a.e('s_lshl_b32 s7, s3, 6')
    a.e('s_add_u32 s7, s7, s6')
    for i in range(8):
        a.e(f'v_add_u32 v6, {8*i}, v4')
        a.e('v_lshrrev_b32 v7, 1, v6')
        a.e('v_and_b32 v7, 7, v7')
        a.e('v_xor_b32 v7, v7, v5')
        a.e('v_add_u32 v6, s7, v6')
        a.e('v_lshlrev_b32 v6, 10, v6')
        a.e(f'v_lshl_add_u32 v{32+i}, v7, 4, v6')
    a.e('s_lshl_b32 s7, s3, 13')
    a.e('s_add_u32 s7, s7, 0x10000')
    def dma():
        a.e('s_add_u32 s12, s16, s7')
        for i in range(8):
            a.e(f's_add_u32 m0, s12, {1024*i}')
            a.e('s_nop 0')
            a.e(f'buffer_load_dwordx4 v{32+i}, s[40:43], s13 offen lds')
        a.e('s_add_u32 s13, s13, 128')
        a.e('s_add_u32 s16, s16, 32768')
        a.e('s_cmp_eq_u32 s16, 98304')
        a.e('s_cselect_b32 s16, 0, s16')
    a.e('s_mov_b32 s13, 0')
    a.e('s_mov_b32 s16, 0')
    dma()
    dma()
    a.e('v_and_b32 v6, 7, v0')
    a.e('v_lshrrev_b32 v7, 3, v0')
    a.e(f's_mov_b32 s8, {2*ROW}')
    a.e('v_mul_lo_u32 v8, v7, s8')
    a.e('v_lshl_add_u32 v8, v6, 4, v8')
    a.e('s_lshl_b32 s8, s4, 7')
    a.e('v_add_u32 v8, s8, v8')
    a.e('v_mov_b32 v14, v8')
    def unpack(dst, src, e):
        if e % 2 == 0:
            a.e(f'v_lshlrev_b32 v{dst}, 16, v{src + e//2}')
        else:
            a.e(f'v_and_b32 v{dst}, 0xffff0000, v{src + e//2}')
    a.e(f's_mov_b32 s15, {ROW}')
    for it in range(8):
        a.e(f'buffer_load_dwordx4 v[{128+8*it}:{131+8*it}], v8, s[36:39], 0 offen')
        a.e(f'buffer_load_dwordx4 v[{132+8*it}:{135+8*it}], v8, s[36:39], s15 offen')
        a.e(f'v_add_u32 v8, {64*ROW}, v8')
    for e in range(16):
        a.e(f'v_mov_b32 v{16+e}, 0')
    a.e('s_waitcnt vmcnt(0)')
    a.e('s_mov_b32 s14, 0')
    a.label('K3_P1')
    a.e('s_set_gpr_idx_on s14, 1')
    for k in range(4):
        a.e(f'v_mov_b32 v{192+k}, v{128+k}')
    a.e('s_set_gpr_idx_off')
    for e in range(8):
        t = 10 + (e % 2)
        unpack(t, 192, e)
        a.e(f'v_add_f32 v{16+e}, v{16+e}, v{t}')
        a.e(f'v_fma_f32 v{24+e}, v{t}, v{t}, v{24+e}')
    a.e('s_add_u32 s14, s14, 4')
    a.e('s_cmp_lt_u32 s14, 64')
    a.e('s_cbranch_scc1 K3_P1')
    stamp(a, 2)
    PB = 0
    a.e('v_lshlrev_b32 v10, 9, v7')
    a.e('v_lshl_add_u32 v10, v6, 5, v10')
    a.e(f'v_add_u32 v10, {PB}, v10')
    a.e('ds_write_b128 v10, v[16:19]')
    a.e('ds_write_b128 v10, v[20:23] offset:16')
    a.e('ds_write_b128 v10, v[24:27] offset:256')
    a.e('ds_write_b128 v10, v[28:31] offset:272')
    a.e('s_waitcnt lgkmcnt(0)')
    a.e('s_barrier')
    a.e('v_cmp_gt_u32 vcc, 128, v0')
    a.e('s_and_saveexec_b64 s[10:11], vcc')
    a.e('v_lshlrev_b32 v10, 2, v0')
    a.e(f'v_add_u32 v10, {PB}, v10')
    for k in range(32):
        a.e(f'ds_read_b32 v{192+k}, v10 offset:{512*k}')
    a.e('s_waitcnt lgkmcnt(0)')
    for k in range(1, 32):
        a.e(f'v_add_f32 v192, v192, v{192+k}')
    a.e('ds_write_b32 v10, v192 offset:16384')
    a.e('s_mov_b64 exec, s[10:11]')
    a.e('s_waitcnt lgkmcnt(0)')
    a.e('s_barrier')
    a.e('v_lshlrev_b32 v10, 5, v6')
    a.e(f'v_add_u32 v10, {PB+16384}, v10')
    a.e('ds_read_b128 v[56:59], v10')
    a.e('ds_read_b128 v[60:63], v10 offset:16')
    a.e('ds_read_b128 v[48:51], v10 offset:256')
    a.e('ds_read_b128 v[52:55], v10 offset:272')
    a.e('s_waitcnt lgkmcnt(0)')
    a.e('s_barrier')
    a.e('s_mov_b32 s9, 0x3b000000')
    a.e('s_mov_b32 s10, 0x3727c5ac')
    for j in range(8):
        r = 48 + j
        m = 56 + j
        a.e(f'''
        v_mul_f32 v{m}, s9, v{m}
        v_mul_f32 v{r}, s9, v{r}
        v_fma_f32 v{r}, -v{m}, v{m}, v{r}
        v_max_f32 v{r}, 0, v{r}
        v_cvt_pk_bf16_f32 v{r}, v{r}, v{r}
        v_and_b32 v{r}, 0xffff0000, v{r}
        v_add_f32 v{r}, s10, v{r}
        v_cvt_pk_bf16_f32 v{r}, v{r}, v{r}
        v_and_b32 v{r}, 0xffff0000, v{r}
        v_sqrt_f32 v{r}, v{r}
        s_nop 0
        v_cvt_pk_bf16_f32 v{r}, v{r}, v{r}
        v_and_b32 v{r}, 0xffff0000, v{r}
        v_rcp_f32 v{r}, v{r}
        v_cvt_pk_bf16_f32 v{m}, v{m}, v{m}
        v_and_b32 v{m}, 0xffff0000, v{m}
        ''')
    stamp(a, 3)
    a.e('v_lshrrev_b32 v12, 2, v7')
    a.e('v_and_b32 v13, 3, v7')
    a.e('v_lshlrev_b32 v13, 2, v13')
    a.e('v_lshl_add_u32 v13, v6, 13, v13')
    for e in range(8):
        a.e(f'v_xor_b32 v14, {e}, v6')
        a.e('v_xor_b32 v14, v14, v12')
        a.e(f'v_lshl_add_u32 v{24+e}, v14, 4, v13')
    a.e('s_mov_b32 s14, 0')
    a.label('K3_P2')
    a.e('s_set_gpr_idx_on s14, 1')
    for k in range(8):
        a.e(f'v_mov_b32 v{192+k}, v{128+k}')
    a.e('s_set_gpr_idx_off')
    for e in range(8):
        t = 200 + 2 * (e % 2)
        unpack(t, 192, e)
        unpack(t + 1, 196, e)
        a.e(f'''
        v_sub_f32 v{t}, v{t}, v{56+e}
        v_sub_f32 v{t+1}, v{t+1}, v{56+e}
        v_cvt_pk_bf16_f32 v{t}, v{t}, v{t+1}
        v_lshlrev_b32 v{t+1}, 16, v{t}
        v_and_b32 v{t}, 0xffff0000, v{t}
        v_mul_f32 v{t+1}, v{t+1}, v{48+e}
        v_mul_f32 v{t}, v{t}, v{48+e}
        v_cvt_pk_bf16_f32 v{t}, v{t+1}, v{t}
        ds_write_b32 v{24+e}, v{t} offset:{1024*e}
        v_add_u32 v{24+e}, 128, v{24+e}
        ''')
    a.e('s_add_u32 s14, s14, 8')
    a.e('s_cmp_lt_u32 s14, 64')
    a.e('s_cbranch_scc1 K3_P2')
    for rt in range(2):
        a.e(f'v_add_u32 v11, {32*rt}, v2')
        a.e('v_lshrrev_b32 v12, 3, v11')
        a.e('v_xor_b32 v12, v12, v11')
        a.e('v_and_b32 v12, 7, v12')
        for s in range(4):
            a.e(f'v_lshl_add_u32 v13, v3, 2, {s}')
            a.e('v_xor_b32 v13, v13, v12')
            a.e('v_lshlrev_b32 v13, 4, v13')
            a.e(f'v_lshl_add_u32 v{16+4*rt+s}, v11, 10, v13')
    for r in range(64):
        a.e(f'v_mov_b32 v{160+r}, 0')
    a.e('v_lshrrev_b32 v12, 1, v2')
    a.e('v_and_b32 v12, 7, v12')
    a.e('s_lshl_b32 s9, s3, 13')
    a.e('s_add_u32 s9, s9, 0x10000')
    for st in range(4):
        a.e(f'v_lshl_add_u32 v13, v3, 2, {st}')
        a.e('v_xor_b32 v13, v13, v12')
        a.e('v_lshlrev_b32 v13, 4, v13')
        a.e(f'v_lshl_add_u32 v{40+st}, v2, 7, v13')
        a.e(f'v_add_u32 v{40+st}, s9, v{40+st}')
    a.e('s_mov_b32 s17, 0')
    stamp(a, 4)
    a.e('s_mov_b32 s14, 8')
    a.label('K3_L')
    a.e('s_waitcnt vmcnt(8) lgkmcnt(0)')
    a.e('s_barrier')
    for st in range(4):
        a.e(f'v_add_u32 v{48+st}, s17, v{40+st}')
    for st in range(4):
        for rt in range(2):
            r = 128 + 16 * rt + 4 * st
            a.e(f'ds_read_b128 v[{r}:{r+3}], v{16+4*rt+st}')
        for ct in range(2):
            r = 96 + 16 * ct + 4 * st
            a.e(f'ds_read_b128 v[{r}:{r+3}], v{48+st} offset:{4096*ct}')
    dma()
    a.e('s_add_u32 s17, s17, 32768')
    a.e('s_cmp_eq_u32 s17, 98304')
    a.e('s_cselect_b32 s17, 0, s17')
    for st in range(4):
        a.e(f's_waitcnt lgkmcnt({12 - 4*st})')
        for rt in range(2):
            for ct in range(2):
                acc = 160 + 16 * (2 * rt + ct)
                a.e(f'v_mfma_f32_32x32x16_bf16 v[{acc}:{acc+15}], v[{128+16*rt+4*st}:{131+16*rt+4*st}], v[{96+16*ct+4*st}:{96+16*ct+4*st+3}], v[{acc}:{acc+15}]')
    for k in range(8):
        a.e(f'v_add_u32 v{16+k}, 128, v{16+k}')
    a.e('s_sub_u32 s14, s14, 1')
    a.e('s_cmp_lg_u32 s14, 0')
    a.e('s_cbranch_scc1 K3_L')
    a.e('s_nop 15')
    a.e('s_waitcnt vmcnt(0) lgkmcnt(0)')
    a.e('s_barrier')
    stamp(a, 5)
    a.e('v_lshlrev_b32 v11, 2, v3')
    a.e('s_movk_i32 s9, 1040')
    a.e('v_mul_lo_u32 v11, v11, s9')
    a.e('v_lshl_add_u32 v11, v2, 2, v11')
    a.e('s_lshl_b32 s9, s3, 8')
    a.e('v_add_u32 v11, s9, v11')
    a.e(f'v_add_u32 v12, {32*1040}, v11')
    for rt in range(2):
        for ct in range(2):
            acc = 160 + 16 * (2 * rt + ct)
            for r in range(16):
                row = 8 * (r // 4) + (r % 4)
                a.e(f'ds_write_b32 v{11+rt}, v{acc+r} offset:{row*1040 + 128*ct}')
    a.e('s_waitcnt lgkmcnt(0)')
    a.e('s_barrier')
    a.e('v_lshrrev_b32 v11, 5, v0')
    a.e('v_and_b32 v12, 31, v0')
    a.e('s_movk_i32 s9, 1040')
    a.e('v_mul_lo_u32 v13, v11, s9')
    a.e('v_lshl_add_u32 v13, v12, 5, v13')
    a.e('s_lshl_b32 s8, s4, 6')
    a.e('v_add_u32 v11, s8, v11')
    a.e('s_movk_i32 s9, 3584')
    a.e('v_mul_lo_u32 v11, v11, s9')
    a.e('v_lshl_add_u32 v11, v12, 4, v11')
    a.e('s_lshl_b32 s9, s5, 9')
    a.e('v_add_u32 v11, s9, v11')
    stamp(a, 6)
    a.e('s_mov_b32 s14, 8')
    a.label('K3_E')
    a.e('ds_read_b128 v[64:67], v13')
    a.e('ds_read_b128 v[68:71], v13 offset:16')
    a.e(f'v_add_u32 v13, {8*1040}, v13')
    a.e('s_waitcnt lgkmcnt(0)')
    for e in range(8):
        a.e(f'v_cvt_pk_bf16_f32 v{64+e}, v{64+e}, v{64+e}')
        a.e(f'v_and_b32 v{64+e}, 0xffff0000, v{64+e}')
        a.e(f'v_mul_f32 v{72+e}, 0xbfb8aa3b, v{64+e}')
        a.e(f'v_exp_f32 v{72+e}, v{72+e}')
    for e in range(8):
        a.e(f'v_add_f32 v{72+e}, 1.0, v{72+e}')
    for e in range(8):
        a.e(f'v_rcp_f32 v{72+e}, v{72+e}')
    a.e('s_nop 0')
    for e in range(8):
        a.e(f'v_mul_f32 v{64+e}, v{64+e}, v{72+e}')
    for k in range(4):
        a.e(f'v_cvt_pk_bf16_f32 v{80+k}, v{64+2*k}, v{65+2*k}')
    a.e('buffer_store_dwordx4 v[80:83], v11, s[44:47], 0 offen')
    a.e(f'v_add_u32 v11, {8*3584}, v11')
    a.e('s_sub_u32 s14, s14, 1')
    a.e('s_cmp_lg_u32 s14, 0')
    a.e('s_cbranch_scc1 K3_E')
    a.e('s_waitcnt vmcnt(0)')
    stamp(a, 7)
    a.label('K3_END')
    a.e('s_endpgm')
    return a.text()

K4_LDS = 3 * 32768
def gen_k4():
    a = Asm()
    a.e('s_cmp_ge_u32 s2, 256')
    a.e('s_cbranch_scc1 K4_END')
    a.e('s_load_dwordx2 s[8:9], s[0:1], 96')
    a.e('s_load_dwordx2 s[32:33], s[0:1], 112')
    a.e('v_lshrrev_b32 v1, 6, v0')
    a.e('s_nop 1')
    a.e('v_readfirstlane_b32 s3, v1')
    a.e('v_and_b32 v1, 63, v0')
    a.e('s_and_b32 s4, s2, 7')
    a.e('s_lshl_b32 s4, s4, 2')
    a.e('s_lshr_b32 s5, s2, 3')
    a.e('s_and_b32 s5, s5, 3')
    a.e('s_add_u32 s4, s4, s5')
    a.e('s_lshl_b32 s4, s4, 6')
    a.e('s_lshr_b32 s5, s2, 5')
    a.e('s_lshl_b32 s5, s5, 6')
    a.e('s_waitcnt lgkmcnt(0)')
    stamp_init(a, 100)
    stamp(a, 0, 16)
    a.srd_off(36, 32, WS_HT, TSZ)
    a.srd_off(40, 32, WS_W2T, 512 * 1792 * 2)
    a.srd_off(44, 32, WS_G, 2048 * 1792 * 2)
    a.srd(48, 8, 0x200000)
    a.e('v_and_b32 v2, 31, v1')
    a.e('v_lshrrev_b32 v3, 5, v1')
    a.e('v_lshrrev_b32 v4, 4, v1')
    a.e('v_and_b32 v5, 15, v1')
    a.e('s_movk_i32 s9, 3584')
    a.e('s_lshl_b32 s6, s3, 4')
    for i in range(4):
        a.e(f'v_add_u32 v6, {4*i}, v4')
        a.e('v_xor_b32 v7, v6, v5')
        a.e('v_add_u32 v6, s6, v6')
        a.e('v_add_u32 v8, s4, v6')
        a.e('v_mul_lo_u32 v8, v8, s9')
        a.e(f'v_lshl_add_u32 v{20+i}, v7, 4, v8')
        a.e('v_add_u32 v8, s5, v6')
        a.e('v_mul_lo_u32 v8, v8, s9')
        a.e(f'v_lshl_add_u32 v{24+i}, v7, 4, v8')
    a.e('s_lshl_b32 s7, s3, 12')
    def dma():
        for i in range(4):
            a.e(f's_add_u32 s12, s16, s7')
            a.e(f's_add_u32 m0, s12, {1024*i}')
            a.e('s_nop 0')
            a.e(f'buffer_load_dwordx4 v{20+i}, s[44:47], s13 offen lds')
            a.e(f's_add_u32 m0, s12, {16384 + 1024*i}')
            a.e('s_nop 0')
            a.e(f'buffer_load_dwordx4 v{24+i}, s[40:43], s13 offen lds')
        a.e('s_add_u32 s13, s13, 256')
        a.e('s_add_u32 s16, s16, 32768')
        a.e('s_cmp_eq_u32 s16, 98304')
        a.e('s_cselect_b32 s16, 0, s16')
    a.e('s_mov_b32 s13, 0')
    a.e('s_mov_b32 s16, 0')
    dma()
    dma()
    a.e('s_lshl_b32 s6, s3, 2')
    for st in range(2):
        a.e(f'v_add_u32 v6, {2*st}, v3')
        a.e('v_add_u32 v6, s6, v6')
        a.e('v_xor_b32 v6, v6, v5')
        a.e('v_lshlrev_b32 v6, 4, v6')
        a.e(f'v_lshl_add_u32 v{28+st}, v2, 8, v6')
    a.e('v_lshrrev_b32 v9, 2, v0')
    a.e('v_and_b32 v10, 3, v0')
    a.e('v_lshlrev_b32 v10, 4, v10')
    for r in range(64):
        a.e(f'v_mov_b32 v{160+r}, 0')
    a.e('s_mov_b32 s17, 0')
    stamp(a, 1, 16)
    a.e('s_mov_b32 s14, 14')
    a.label('K4_L')
    a.e('s_waitcnt vmcnt(8)')
    a.e('s_barrier')
    a.e('v_add_u32 v30, s17, v28')
    a.e('v_add_u32 v31, s17, v29')
    for st in range(2):
        for t in range(2):
            a.e(f'ds_read_b128 v[{64+16*st+4*t}:{67+16*st+4*t}], v{30+st} offset:{8192*t}')
            a.e(f'ds_read_b128 v[{72+16*st+4*t}:{75+16*st+4*t}], v{30+st} offset:{16384+8192*t}')
    dma()
    a.e('s_add_u32 s17, s17, 32768')
    a.e('s_cmp_eq_u32 s17, 98304')
    a.e('s_cselect_b32 s17, 0, s17')
    for st in range(2):
        a.e(f's_waitcnt lgkmcnt({4 - 4*st})')
        for rt in range(2):
            for ct in range(2):
                acc = 160 + 16 * (2 * rt + ct)
                A = 64 + 16 * st + 4 * rt
                B = 72 + 16 * st + 4 * ct
                a.e(f'v_mfma_f32_32x32x16_bf16 v[{acc}:{acc+15}], v[{A}:{A+3}], v[{B}:{B+3}], v[{acc}:{acc+15}]')
    a.e('s_sub_u32 s14, s14, 1')
    a.e('s_cmp_lg_u32 s14, 0')
    a.e('s_cbranch_scc1 K4_L')
    a.e('v_add_u32 v11, s5, v10')
    a.e(f's_mov_b32 s10, {ROW}')
    a.e('v_mul_lo_u32 v11, v11, s10')
    a.e('v_add_u32 v12, s4, v9')
    a.e('v_lshl_add_u32 v11, v12, 1, v11')
    for e in range(16):
        a.e(f'buffer_load_ushort v{32+e}, v11, s[36:39], 0 offen')
        a.e(f'v_add_u32 v11, {ROW}, v11')
    a.e('s_waitcnt vmcnt(16)')
    a.e('s_barrier')
    stamp(a, 2, 16)
    a.e('s_lshl_b32 s6, s3, 14')
    a.e('v_lshlrev_b32 v8, 10, v3')
    a.e('v_lshl_add_u32 v8, v2, 2, v8')
    a.e('v_add_u32 v8, s6, v8')
    for rt in range(2):
        for ct in range(2):
            acc = 160 + 16 * (2 * rt + ct)
            for r in range(16):
                row = 32 * rt + 8 * (r // 4) + (r % 4)
                a.e(f'ds_write_b32 v8, v{acc+r} offset:{row*256 + 128*ct}')
    a.e('s_waitcnt lgkmcnt(0)')
    a.e('s_barrier')
    a.e('v_lshlrev_b32 v13, 8, v9')
    a.e('v_lshl_add_u32 v13, v10, 2, v13')
    for w in range(4):
        for k in range(4):
            r = 64 + 16 * w + 4 * k
            a.e(f'ds_read_b128 v[{r}:{r+3}], v13 offset:{16384*w + 16*k}')
    a.e('s_waitcnt vmcnt(0) lgkmcnt(0)')
    for e in range(16):
        a.e(f'''
        v_add_f32 v{64+e}, v{64+e}, v{80+e}
        v_add_f32 v{96+e}, v{96+e}, v{112+e}
        v_add_f32 v{64+e}, v{64+e}, v{96+e}
        v_cvt_pk_bf16_f32 v{64+e}, v{64+e}, v{64+e}
        v_and_b32 v{64+e}, 0xffff0000, v{64+e}
        v_lshlrev_b32 v{32+e}, 16, v{32+e}
        v_add_f32 v{64+e}, v{64+e}, v{32+e}
        ''')
    for k in range(8):
        a.e(f'v_cvt_pk_bf16_f32 v{48+k}, v{64+2*k}, v{65+2*k}')
    a.e('v_lshlrev_b32 v14, 10, v12')
    a.e('v_add_u32 v15, s5, v10')
    a.e('v_lshl_add_u32 v14, v15, 1, v14')
    a.e('buffer_store_dwordx4 v[48:51], v14, s[48:51], 0 offen')
    a.e('buffer_store_dwordx4 v[52:55], v14, s[48:51], 0 offen offset:16')
    a.e('s_waitcnt vmcnt(0)')
    stamp(a, 3, 16)
    a.label('K4_END')
    a.e('s_endpgm')
    return a.text()
```

```python
from lib import *
K3_LDS = 65536 + 3 * 32768
PART = 0
STAT = 8192

def gen_k3():
    a = Asm()
    a.e('s_cmp_ge_u32 s2, 224')
    a.e('s_cbranch_scc1 K3_END')
    a.e('s_load_dwordx2 s[32:33], s[0:1], 112')
    a.e('v_lshrrev_b32 v1, 6, v0')
    a.e('s_nop 1')
    a.e('v_readfirstlane_b32 s3, v1')
    a.e('v_and_b32 v1, 63, v0')
    a.e('s_lshr_b32 s6, s2, 3')
    a.e('s_mul_i32 s4, s6, 9363')
    a.e('s_lshr_b32 s4, s4, 16')
    a.e('s_mul_i32 s5, s4, 7')
    a.e('s_sub_u32 s5, s6, s5')
    a.e('s_and_b32 s6, s2, 7')
    a.e('s_lshl_b32 s6, s6, 2')
    a.e('s_add_u32 s4, s4, s6')
    a.e('s_waitcnt lgkmcnt(0)')
    stamp_init(a, 100)
    stamp(a, 0)
    a.srd_off(36, 32, WS_HT, TSZ)
    a.srd_off(40, 32, WS_W1T, 512 * 1792 * 2)
    a.srd_off(44, 32, WS_G, 2048 * 1792 * 2)
    a.e('v_and_b32 v2, 31, v1')
    a.e('v_lshrrev_b32 v3, 5, v1')
    a.e('s_lshl_b32 s6, s5, 8')
    a.e('v_lshrrev_b32 v4, 3, v1')
    a.e('v_and_b32 v5, 7, v1')
    a.e('s_lshl_b32 s7, s3, 6')
    a.e('s_add_u32 s7, s7, s6')
    for i in range(8):
        a.e(f'v_add_u32 v6, {8*i}, v4')
        a.e('v_lshrrev_b32 v7, 1, v6')
        a.e('v_and_b32 v7, 7, v7')
        a.e('v_xor_b32 v7, v7, v5')
        a.e('v_add_u32 v6, s7, v6')
        a.e('v_lshlrev_b32 v6, 10, v6')
        a.e(f'v_lshl_add_u32 v{32+i}, v7, 4, v6')
    a.e('s_lshl_b32 s7, s3, 13')
    a.e('s_add_u32 s7, s7, 0x10000')
    def dma():
        a.e('s_add_u32 s12, s16, s7')
        for i in range(8):
            a.e(f's_add_u32 m0, s12, {1024*i}')
            a.e('s_nop 0')
            a.e(f'buffer_load_dwordx4 v{32+i}, s[40:43], s13 offen lds')
        a.e('s_add_u32 s13, s13, 128')
        a.e('s_add_u32 s16, s16, 32768')
        a.e('s_cmp_eq_u32 s16, 98304')
        a.e('s_cselect_b32 s16, 0, s16')
    a.e('s_mov_b32 s13, 0')
    a.e('s_mov_b32 s16, 0')
    dma()
    dma()
    a.e('v_and_b32 v6, 7, v0')
    a.e('v_lshrrev_b32 v7, 3, v0')
    a.e(f's_mov_b32 s8, {2*ROW}')
    a.e('v_mul_lo_u32 v8, v7, s8')
    a.e('v_lshl_add_u32 v8, v6, 4, v8')
    a.e('s_lshl_b32 s8, s4, 7')
    a.e('v_add_u32 v8, s8, v8')
    a.e('v_mov_b32 v14, v8')
    def unpack(dst, src, e):
        if e % 2 == 0:
            a.e(f'v_lshlrev_b32 v{dst}, 16, v{src + e//2}')
        else:
            a.e(f'v_and_b32 v{dst}, 0xffff0000, v{src + e//2}')
    a.e(f's_mov_b32 s15, {ROW}')
    for it in range(8):
        a.e(f'buffer_load_dwordx4 v[{128+8*it}:{131+8*it}], v8, s[36:39], 0 offen')
        a.e(f'buffer_load_dwordx4 v[{132+8*it}:{135+8*it}], v8, s[36:39], s15 offen')
        a.e(f'v_add_u32 v8, {64*ROW}, v8')
    for e in range(16):
        a.e(f'v_mov_b32 v{16+e}, 0')
    for k in range(16):
        a.e(f's_waitcnt vmcnt({15-k})')
        for e in range(8):
            t = 10 + (e % 2)
            unpack(t, 128 + 4 * k, e)
            a.e(f'v_add_f32 v{16+e}, v{16+e}, v{t}')
            a.e(f'v_fma_f32 v{24+e}, v{t}, v{t}, v{24+e}')
    stamp(a, 2)
    PB = 0
    a.e('v_lshlrev_b32 v10, 9, v7')
    a.e('v_lshl_add_u32 v10, v6, 5, v10')
    a.e(f'v_add_u32 v10, {PB}, v10')
    a.e('ds_write_b128 v10, v[16:19]')
    a.e('ds_write_b128 v10, v[20:23] offset:16')
    a.e('ds_write_b128 v10, v[24:27] offset:256')
    a.e('ds_write_b128 v10, v[28:31] offset:272')
    a.e('s_waitcnt lgkmcnt(0)')
    a.e('s_barrier')
    a.e('v_cmp_gt_u32 vcc, 128, v0')
    a.e('s_and_saveexec_b64 s[10:11], vcc')
    a.e('v_lshlrev_b32 v10, 2, v0')
    a.e(f'v_add_u32 v10, {PB}, v10')
    for k in range(32):
        a.e(f'ds_read_b32 v{192+k}, v10 offset:{512*k}')
    a.e('s_waitcnt lgkmcnt(0)')
    for k in range(1, 32):
        a.e(f'v_add_f32 v192, v192, v{192+k}')
    a.e('ds_write_b32 v10, v192 offset:16384')
    a.e('s_mov_b64 exec, s[10:11]')
    a.e('s_waitcnt lgkmcnt(0)')
    a.e('s_barrier')
    a.e('v_lshlrev_b32 v10, 5, v6')
    a.e(f'v_add_u32 v10, {PB+16384}, v10')
    a.e('ds_read_b128 v[56:59], v10')
    a.e('ds_read_b128 v[60:63], v10 offset:16')
    a.e('ds_read_b128 v[48:51], v10 offset:256')
    a.e('ds_read_b128 v[52:55], v10 offset:272')
    a.e('s_waitcnt lgkmcnt(0)')
    a.e('s_barrier')
    a.e('s_mov_b32 s9, 0x3b000000')
    a.e('s_mov_b32 s10, 0x3727c5ac')
    for j in range(8):
        r = 48 + j
        m = 56 + j
        a.e(f'''
        v_mul_f32 v{m}, s9, v{m}
        v_mul_f32 v{r}, s9, v{r}
        v_fma_f32 v{r}, -v{m}, v{m}, v{r}
        v_max_f32 v{r}, 0, v{r}
        v_cvt_pk_bf16_f32 v{r}, v{r}, v{r}
        v_and_b32 v{r}, 0xffff0000, v{r}
        v_add_f32 v{r}, s10, v{r}
        v_cvt_pk_bf16_f32 v{r}, v{r}, v{r}
        v_and_b32 v{r}, 0xffff0000, v{r}
        v_sqrt_f32 v{r}, v{r}
        s_nop 0
        v_cvt_pk_bf16_f32 v{r}, v{r}, v{r}
        v_and_b32 v{r}, 0xffff0000, v{r}
        v_rcp_f32 v{r}, v{r}
        v_cvt_pk_bf16_f32 v{m}, v{m}, v{m}
        v_and_b32 v{m}, 0xffff0000, v{m}
        ''')
    stamp(a, 3)
    a.e('v_lshrrev_b32 v12, 2, v7')
    a.e('v_and_b32 v13, 3, v7')
    a.e('v_lshlrev_b32 v13, 2, v13')
    a.e('v_lshl_add_u32 v13, v6, 13, v13')
    a.e('v_and_b32 v9, 1, v6')
    a.e('v_lshlrev_b32 v9, 3, v9')
    a.e('v_lshrrev_b32 v10, 1, v6')
    a.e('v_lshlrev_b32 v10, 1, v10')
    a.e('v_xor_b32 v9, v9, v10')
    for e in range(8):
        a.e(f'v_xor_b32 v14, {e}, v9')
        a.e('v_xor_b32 v14, v14, v12')
        a.e(f'v_lshl_add_u32 v{24+e}, v14, 4, v13')
        a.e(f'v_xor_b32 v{192+e}, 128, v{24+e}')
    for it in range(8):
        for e in range(8):
            unpack(11, 128 + 8 * it, e)
            unpack(12, 132 + 8 * it, e)
            a.e(f'''
            v_sub_f32 v11, v11, v{56+e}
            v_sub_f32 v12, v12, v{56+e}
            v_cvt_pk_bf16_f32 v11, v11, v12
            v_lshlrev_b32 v12, 16, v11
            v_and_b32 v11, 0xffff0000, v11
            v_mul_f32 v12, v12, v{48+e}
            v_mul_f32 v11, v11, v{48+e}
            v_cvt_pk_bf16_f32 v11, v12, v11
            ds_write_b32 v{(24 if it % 2 == 0 else 192)+e}, v11 offset:{1024*e + 256*(it//2)}
            ''')
    for rt in range(2):
        a.e(f'v_add_u32 v11, {32*rt}, v2')
        a.e('v_lshrrev_b32 v12, 4, v11')
        a.e('v_and_b32 v12, 3, v12')
        a.e('v_lshlrev_b32 v12, 1, v12')
        a.e('v_and_b32 v13, 15, v11')
        a.e('v_xor_b32 v12, v12, v13')
        for s in range(4):
            a.e(f'v_lshl_add_u32 v13, v3, 2, {s}')
            a.e('v_xor_b32 v13, v13, v12')
            a.e('v_lshlrev_b32 v13, 4, v13')
            a.e(f'v_lshl_add_u32 v{16+4*rt+s}, v11, 10, v13')
    for r in range(64):
        a.e(f'v_mov_b32 v{160+r}, 0')
    a.e('v_lshrrev_b32 v12, 1, v2')
    a.e('v_and_b32 v12, 7, v12')
    a.e('s_lshl_b32 s9, s3, 13')
    a.e('s_add_u32 s9, s9, 0x10000')
    for st in range(4):
        a.e(f'v_lshl_add_u32 v13, v3, 2, {st}')
        a.e('v_xor_b32 v13, v13, v12')
        a.e('v_lshlrev_b32 v13, 4, v13')
        a.e(f'v_lshl_add_u32 v{40+st}, v2, 7, v13')
        a.e(f'v_add_u32 v{40+st}, s9, v{40+st}')
    a.e('s_mov_b32 s17, 0')
    stamp(a, 4)
    a.e('s_mov_b32 s14, 8')
    a.label('K3_L')
    a.e('s_waitcnt vmcnt(8) lgkmcnt(0)')
    a.e('s_barrier')
    for st in range(4):
        a.e(f'v_add_u32 v{48+st}, s17, v{40+st}')
    for st in range(4):
        for rt in range(2):
            r = 128 + 16 * rt + 4 * st
            a.e(f'ds_read_b128 v[{r}:{r+3}], v{16+4*rt+st}')
        for ct in range(2):
            r = 96 + 16 * ct + 4 * st
            a.e(f'ds_read_b128 v[{r}:{r+3}], v{48+st} offset:{4096*ct}')
    dma()
    a.e('s_add_u32 s17, s17, 32768')
    a.e('s_cmp_eq_u32 s17, 98304')
    a.e('s_cselect_b32 s17, 0, s17')
    for st in range(4):
        a.e(f's_waitcnt lgkmcnt({12 - 4*st})')
        for rt in range(2):
            for ct in range(2):
                acc = 160 + 16 * (2 * rt + ct)
                a.e(f'v_mfma_f32_32x32x16_bf16 v[{acc}:{acc+15}], v[{128+16*rt+4*st}:{131+16*rt+4*st}], v[{96+16*ct+4*st}:{96+16*ct+4*st+3}], v[{acc}:{acc+15}]')
    a.e('s_and_b32 s18, s14, 1')
    a.e('s_lshl_b32 s18, s18, 8')
    for k in range(8):
        a.e(f'v_xor_b32 v{16+k}, 128, v{16+k}')
        a.e(f'v_add_u32 v{16+k}, s18, v{16+k}')
    a.e('s_sub_u32 s14, s14, 1')
    a.e('s_cmp_lg_u32 s14, 0')
    a.e('s_cbranch_scc1 K3_L')
    a.e('s_nop 15')
    a.e('s_waitcnt vmcnt(0) lgkmcnt(0)')
    a.e('s_barrier')
    stamp(a, 5)
    a.e('v_lshlrev_b32 v11, 2, v3')
    a.e('s_movk_i32 s9, 1040')
    a.e('v_mul_lo_u32 v11, v11, s9')
    a.e('v_lshl_add_u32 v11, v2, 2, v11')
    a.e('s_lshl_b32 s9, s3, 8')
    a.e('v_add_u32 v11, s9, v11')
    a.e(f'v_add_u32 v12, {32*1040}, v11')
    for rt in range(2):
        for ct in range(2):
            acc = 160 + 16 * (2 * rt + ct)
            for r in range(16):
                row = 8 * (r // 4) + (r % 4)
                a.e(f'ds_write_b32 v{11+rt}, v{acc+r} offset:{row*1040 + 128*ct}')
    a.e('s_waitcnt lgkmcnt(0)')
    a.e('s_barrier')
    a.e('v_lshrrev_b32 v11, 5, v0')
    a.e('v_and_b32 v12, 31, v0')
    a.e('s_movk_i32 s9, 1040')
    a.e('v_mul_lo_u32 v13, v11, s9')
    a.e('v_lshl_add_u32 v13, v12, 5, v13')
    a.e('s_lshl_b32 s8, s4, 6')
    a.e('v_add_u32 v11, s8, v11')
    a.e('s_movk_i32 s9, 3584')
    a.e('v_mul_lo_u32 v11, v11, s9')
    a.e('v_lshl_add_u32 v11, v12, 4, v11')
    a.e('s_lshl_b32 s9, s5, 9')
    a.e('v_add_u32 v11, s9, v11')
    stamp(a, 6)
    a.e('s_mov_b32 s14, 8')
    a.label('K3_E')
    a.e('ds_read_b128 v[64:67], v13')
    a.e('ds_read_b128 v[68:71], v13 offset:16')
    a.e(f'v_add_u32 v13, {8*1040}, v13')
    a.e('s_waitcnt lgkmcnt(0)')
    for e in range(8):
        a.e(f'v_cvt_pk_bf16_f32 v{64+e}, v{64+e}, v{64+e}')
        a.e(f'v_and_b32 v{64+e}, 0xffff0000, v{64+e}')
        a.e(f'v_mul_f32 v{72+e}, 0xbfb8aa3b, v{64+e}')
        a.e(f'v_exp_f32 v{72+e}, v{72+e}')
    for e in range(8):
        a.e(f'v_add_f32 v{72+e}, 1.0, v{72+e}')
    for e in range(8):
        a.e(f'v_rcp_f32 v{72+e}, v{72+e}')
    a.e('s_nop 0')
    for e in range(8):
        a.e(f'v_mul_f32 v{64+e}, v{64+e}, v{72+e}')
    for k in range(4):
        a.e(f'v_cvt_pk_bf16_f32 v{80+k}, v{64+2*k}, v{65+2*k}')
    a.e('buffer_store_dwordx4 v[80:83], v11, s[44:47], 0 offen')
    a.e(f'v_add_u32 v11, {8*3584}, v11')
    a.e('s_sub_u32 s14, s14, 1')
    a.e('s_cmp_lg_u32 s14, 0')
    a.e('s_cbranch_scc1 K3_E')
    a.e('s_waitcnt vmcnt(0)')
    stamp(a, 7)
    a.label('K3_END')
    a.e('s_endpgm')
    return a.text()

K4_LDS = 3 * 32768
def gen_k4():
    a = Asm()
    a.e('s_cmp_ge_u32 s2, 256')
    a.e('s_cbranch_scc1 K4_END')
    a.e('s_load_dwordx2 s[8:9], s[0:1], 96')
    a.e('s_load_dwordx2 s[32:33], s[0:1], 112')
    a.e('v_lshrrev_b32 v1, 6, v0')
    a.e('s_nop 1')
    a.e('v_readfirstlane_b32 s3, v1')
    a.e('v_and_b32 v1, 63, v0')
    a.e('s_and_b32 s4, s2, 7')
    a.e('s_lshl_b32 s4, s4, 2')
    a.e('s_lshr_b32 s5, s2, 3')
    a.e('s_and_b32 s5, s5, 3')
    a.e('s_add_u32 s4, s4, s5')
    a.e('s_lshl_b32 s4, s4, 6')
    a.e('s_lshr_b32 s5, s2, 5')
    a.e('s_lshl_b32 s5, s5, 6')
    a.e('s_waitcnt lgkmcnt(0)')
    stamp_init(a, 100)
    stamp(a, 0, 16)
    a.srd_off(36, 32, WS_HT, TSZ)
    a.srd_off(40, 32, WS_W2T, 512 * 1792 * 2)
    a.srd_off(44, 32, WS_G, 2048 * 1792 * 2)
    a.srd(48, 8, 0x200000)
    a.e('v_and_b32 v2, 31, v1')
    a.e('v_lshrrev_b32 v3, 5, v1')
    a.e('v_lshrrev_b32 v4, 4, v1')
    a.e('v_and_b32 v5, 15, v1')
    a.e('s_movk_i32 s9, 3584')
    a.e('s_lshl_b32 s6, s3, 4')
    for i in range(4):
        a.e(f'v_add_u32 v6, {4*i}, v4')
        a.e('v_xor_b32 v7, v6, v5')
        a.e('v_add_u32 v6, s6, v6')
        a.e('v_add_u32 v8, s4, v6')
        a.e('v_mul_lo_u32 v8, v8, s9')
        a.e(f'v_lshl_add_u32 v{20+i}, v7, 4, v8')
        a.e('v_add_u32 v8, s5, v6')
        a.e('v_mul_lo_u32 v8, v8, s9')
        a.e(f'v_lshl_add_u32 v{24+i}, v7, 4, v8')
    a.e('s_lshl_b32 s7, s3, 12')
    def dma():
        for i in range(4):
            a.e(f's_add_u32 s12, s16, s7')
            a.e(f's_add_u32 m0, s12, {1024*i}')
            a.e('s_nop 0')
            a.e(f'buffer_load_dwordx4 v{20+i}, s[44:47], s13 offen lds')
            a.e(f's_add_u32 m0, s12, {16384 + 1024*i}')
            a.e('s_nop 0')
            a.e(f'buffer_load_dwordx4 v{24+i}, s[40:43], s13 offen lds')
        a.e('s_add_u32 s13, s13, 256')
        a.e('s_add_u32 s16, s16, 32768')
        a.e('s_cmp_eq_u32 s16, 98304')
        a.e('s_cselect_b32 s16, 0, s16')
    a.e('s_mov_b32 s13, 0')
    a.e('s_mov_b32 s16, 0')
    dma()
    dma()
    a.e('s_lshl_b32 s6, s3, 2')
    for st in range(2):
        a.e(f'v_add_u32 v6, {2*st}, v3')
        a.e('v_add_u32 v6, s6, v6')
        a.e('v_xor_b32 v6, v6, v5')
        a.e('v_lshlrev_b32 v6, 4, v6')
        a.e(f'v_lshl_add_u32 v{28+st}, v2, 8, v6')
    a.e('v_lshrrev_b32 v9, 2, v0')
    a.e('v_and_b32 v10, 3, v0')
    a.e('v_lshlrev_b32 v10, 4, v10')
    for r in range(64):
        a.e(f'v_mov_b32 v{160+r}, 0')
    a.e('s_mov_b32 s17, 0')
    stamp(a, 1, 16)
    a.e('s_mov_b32 s14, 14')
    a.label('K4_L')
    a.e('s_waitcnt vmcnt(8)')
    a.e('s_barrier')
    a.e('v_add_u32 v30, s17, v28')
    a.e('v_add_u32 v31, s17, v29')
    for st in range(2):
        for t in range(2):
            a.e(f'ds_read_b128 v[{64+16*st+4*t}:{67+16*st+4*t}], v{30+st} offset:{8192*t}')
            a.e(f'ds_read_b128 v[{72+16*st+4*t}:{75+16*st+4*t}], v{30+st} offset:{16384+8192*t}')
    dma()
    a.e('s_add_u32 s17, s17, 32768')
    a.e('s_cmp_eq_u32 s17, 98304')
    a.e('s_cselect_b32 s17, 0, s17')
    for st in range(2):
        a.e(f's_waitcnt lgkmcnt({4 - 4*st})')
        for rt in range(2):
            for ct in range(2):
                acc = 160 + 16 * (2 * rt + ct)
                A = 64 + 16 * st + 4 * rt
                B = 72 + 16 * st + 4 * ct
                a.e(f'v_mfma_f32_32x32x16_bf16 v[{acc}:{acc+15}], v[{A}:{A+3}], v[{B}:{B+3}], v[{acc}:{acc+15}]')
    a.e('s_sub_u32 s14, s14, 1')
    a.e('s_cmp_lg_u32 s14, 0')
    a.e('s_cbranch_scc1 K4_L')
    a.e('v_add_u32 v11, s5, v10')
    a.e(f's_mov_b32 s10, {ROW}')
    a.e('v_mul_lo_u32 v11, v11, s10')
    a.e('v_add_u32 v12, s4, v9')
    a.e('v_lshl_add_u32 v11, v12, 1, v11')
    for e in range(16):
        a.e(f'buffer_load_ushort v{32+e}, v11, s[36:39], 0 offen')
        a.e(f'v_add_u32 v11, {ROW}, v11')
    a.e('s_waitcnt vmcnt(16)')
    a.e('s_barrier')
    stamp(a, 2, 16)
    a.e('s_lshl_b32 s6, s3, 14')
    a.e('v_lshlrev_b32 v8, 10, v3')
    a.e('v_lshl_add_u32 v8, v2, 2, v8')
    a.e('v_add_u32 v8, s6, v8')
    for rt in range(2):
        for ct in range(2):
            acc = 160 + 16 * (2 * rt + ct)
            for r in range(16):
                row = 32 * rt + 8 * (r // 4) + (r % 4)
                a.e(f'ds_write_b32 v8, v{acc+r} offset:{row*256 + 128*ct}')
    a.e('s_waitcnt lgkmcnt(0)')
    a.e('s_barrier')
    a.e('v_lshlrev_b32 v13, 8, v9')
    a.e('v_lshl_add_u32 v13, v10, 2, v13')
    for w in range(4):
        for k in range(4):
            r = 64 + 16 * w + 4 * k
            a.e(f'ds_read_b128 v[{r}:{r+3}], v13 offset:{16384*w + 16*k}')
    a.e('s_waitcnt vmcnt(0) lgkmcnt(0)')
    for e in range(16):
        a.e(f'''
        v_add_f32 v{64+e}, v{64+e}, v{80+e}
        v_add_f32 v{96+e}, v{96+e}, v{112+e}
        v_add_f32 v{64+e}, v{64+e}, v{96+e}
        v_cvt_pk_bf16_f32 v{64+e}, v{64+e}, v{64+e}
        v_and_b32 v{64+e}, 0xffff0000, v{64+e}
        v_lshlrev_b32 v{32+e}, 16, v{32+e}
        v_add_f32 v{64+e}, v{64+e}, v{32+e}
        ''')
    for k in range(8):
        a.e(f'v_cvt_pk_bf16_f32 v{48+k}, v{64+2*k}, v{65+2*k}')
    a.e('v_lshlrev_b32 v14, 10, v12')
    a.e('v_add_u32 v15, s5, v10')
    a.e('v_lshl_add_u32 v14, v15, 1, v14')
    a.e('buffer_store_dwordx4 v[48:51], v14, s[48:51], 0 offen')
    a.e('buffer_store_dwordx4 v[52:55], v14, s[48:51], 0 offen offset:16')
    a.e('s_waitcnt vmcnt(0)')
    stamp(a, 3, 16)
    a.label('K4_END')
    a.e('s_endpgm')
    return a.text()
```
